```python
import torch

def _softmax(x, axis=-1):
    return torch.softmax(x, dim=axis)
def _gelu(x):
    return torch.nn.functional.gelu(x, approximate="tanh")
def _silu(x):
    return torch.nn.functional.silu(x)
def _sigmoid(x):
    return torch.sigmoid(x)
def _layernorm(x, axis=-1, eps=1e-5):
    m = x.mean(dim=axis, keepdim=True)
    v = x.var(dim=axis, keepdim=True, unbiased=False)
    return (x - m) / torch.sqrt(v + eps)
def _scatter_add(tgt, idx, src, axis=0):
    return tgt.clone().index_add_(axis, idx, src)
def _segment_sum(src, seg, n):
    out = torch.zeros((n,) + src.shape[1:], dtype=src.dtype)
    return out.index_add_(0, seg, src)
def _pad(x, pw):
    flat = tuple(v for pair in reversed(pw) for v in pair)
    return torch.nn.functional.pad(x, flat)

kernel_name = 'gated_mix__compressed_kv_cla__dense_activation_relu__prompt'

def setup_inputs():

    _w = (lambda a: (lambda t: t.to(torch.bfloat16) if t.is_floating_point() else t)(torch.as_tensor(a)))
    def _A_setup():
        B, H, Sq, Sk, D, M = 1, 16, 2048, 2048, 256, 448
        Dc = 4 * D
        return {
            "x": _w((lambda *s: torch.randn(*s, dtype=torch.bfloat16) * 0.05)(B, Sq, M)),
            "c_kv": _w((lambda *s: torch.randn(*s, dtype=torch.bfloat16) * 0.8)(B, Sk, Dc)),
            "w_q": _w((lambda *s: torch.randn(*s, dtype=torch.bfloat16) * 6.4)(M, H, D) * (M ** -0.5)),
            "w_uk": _w((lambda *s: torch.randn(*s, dtype=torch.bfloat16) * 6.4)(Dc, H, D) * (Dc ** -0.5)),
            "w_uv": _w((lambda *s: torch.randn(*s, dtype=torch.bfloat16) * 0.8)(Dc, H, D) * (Dc ** -0.5)),
            "w_o": _w((lambda *s: torch.randn(*s, dtype=torch.bfloat16) * 0.8)(H, D, M) * ((H * D) ** -0.5)),
        }
    _A_in = _A_setup()

    def _B_setup():
        B, S, D, Dff = 1, 2048, 448, 1792
        return {
            "x": _w((lambda *s: torch.randn(*s, dtype=torch.bfloat16) * 0.05)(B, S, D)),
            "w1": _w((lambda *s: torch.randn(*s, dtype=torch.bfloat16) * 0.05)(D, Dff)),
            "w2": _w((lambda *s: torch.randn(*s, dtype=torch.bfloat16) * 0.05)(Dff, D)),
        }
    _B_in = _B_setup()

    return {
        "A_x": _A_in["x"],
        "A_c_kv": _A_in["c_kv"],
        "A_w_q": _A_in["w_q"],
        "A_w_uk": _A_in["w_uk"],
        "A_w_uv": _A_in["w_uv"],
        "A_w_o": _A_in["w_o"],
        "B_x": _B_in["x"],
        "B_w1": _B_in["w1"],
        "B_w2": _B_in["w2"],
        "gate_w": _w((lambda *s: torch.randn(*s, dtype=torch.bfloat16) * 0.05)(448) * 16.0),
    }

def reference(A_x, A_c_kv, A_w_q, A_w_uk, A_w_uv, A_w_o, B_x, B_w1, B_w2, gate_w):
    def _A_ref(x, c_kv, w_q, w_uk, w_uv, w_o):
        B, Sq, M = x.shape[0], x.shape[1], x.shape[2]
        Sk = c_kv.shape[1]
        H, D = w_q.shape[1], w_q.shape[2]
        q = torch.einsum("bqm,mhd->bhqd", x, w_q)
        k = torch.einsum("bkc,chd->bhkd", c_kv, w_uk)
        v = torch.einsum("bkc,chd->bhkd", c_kv, w_uv)
        scores = torch.einsum("bhqd,bhkd->bhqk", q, k) * (D ** -0.5)
        off = Sk - Sq
        qi = torch.arange(Sq)[:, None]
        kj = torch.arange(Sk)[None, :]
        cmask = kj <= (qi + off)
        scores = torch.where(cmask[None, None], scores, -1e9)
        p = _softmax(scores, axis=-1)
        ctx = torch.einsum("bhqk,bhkd->bhqd", p, v)
        return torch.einsum("bhqd,hdm->bqm", ctx, w_o)

    def _B_ref(x, w1, w2):
        h = torch.einsum("bsd,df->bsf", x, w1)
        zero = torch.zeros_like(h)
        h = torch.maximum(h, zero)
        return torch.einsum("bsf,fd->bsd", h, w2)

    x = A_x
    g = _sigmoid((x * gate_w).sum(-1, keepdims=True))
    a = _A_ref(x, A_c_kv, A_w_q, A_w_uk, A_w_uv, A_w_o)
    b = _B_ref(x, B_w1, B_w2)
    return g * a + (1 - g) * b
```

```python
import re
class Asm:
    def __init__(self):
        self.L=[]
    def __call__(self, s):
        for x in s.split("\n"):
            x=x.rstrip()
            if x.strip(): self.L.append(x)
    def text(self): return "\n".join(self.L)+"\n"

def vr(a,n=1,c="v"):
    return f"{c}{a}" if n==1 else f"{c}[{a}:{a+n-1}]"
def ar(a,n=1): return vr(a,n,"a")
def sr(a,n=1): return vr(a,n,"s")

_reg=re.compile(r"^(-?\|?)([vas])(\d+)\|?$|^(-?\|?)([vas])\[(\d+):(\d+)\]\|?$")
def regs(tok):
    tok=tok.strip()
    m=_reg.match(tok)
    if m:
        if m.group(2): return [(m.group(2),int(m.group(3)))]
        return [(m.group(5),i) for i in range(int(m.group(6)),int(m.group(7))+1)]
    if tok=="vcc": return [("s","vcc")]
    if tok in("vcc_lo","vcc_hi"): return [("s","vcc")]
    if tok=="exec": return [("s","exec")]
    if tok=="m0": return [("s","m0")]
    return []
TRANS=("v_exp_f32","v_log_f32","v_rcp_f32","v_rsq_f32","v_sqrt_f32","v_sin_f32","v_cos_f32")
class I:
    def __init__(s, line):
        s.line=line
        t=line.split(";")[0].strip()
        s.label = t.endswith(":")
        s.dir = t.startswith(".")
        s.op=""; s.dst=[]; s.src=[]; s.kind="other"; s.ws=1
        if s.label or s.dir or not t:
            s.ws=0; s.kind="none"; return
        p=t.split(None,1)
        s.op=p[0]
        op=s.op.replace("_e32","").replace("_e64","").replace("_dpp","").replace("_sdwa","")
        s.bop=op
        rest=p[1] if len(p)>1 else ""
        ops=[x.strip() for x in rest.split(",")]
        toks=[]
        mods=""
        for k,x in enumerate(ops):
            y=x.split()
            if not y: continue
            toks.append(y[0]); mods+=" "+" ".join(y[1:])
        s.mods=mods; s.toks=toks
        R=[regs(x) for x in toks]
        if op=="s_nop":
            s.ws=int(toks[0])+1; s.kind="salu"; return
        if op.startswith("v_mfma"):
            s.kind="mfma"; s.dst=R[0]; s.A=R[1]; s.B=R[2]; s.C=R[3] if len(R)>3 else []; s.src=s.A+s.B+s.C
            s.passes=8 if "32x32" in op else 4
        elif op.startswith("v_"):
            s.kind="valu"
            if op.startswith("v_cmp"):
                s.dst=R[0]; s.src=sum(R[1:],[])
                if op.startswith("v_cmpx"): s.dst=s.dst+[("s","exec")]
            elif op.startswith("v_permlane") and "swap" in op:
                s.dst=R[0]+R[1]; s.src=R[0]+R[1]
            elif op in("v_readfirstlane_b32","v_readlane_b32"):
                s.dst=R[0]; s.src=sum(R[1:],[])
            elif op.startswith("v_cndmask"):
                s.dst=R[0]; s.src=sum(R[1:],[])
                if len(R)==3: s.src+= [("s","vcc")]
            elif op in ("v_fmac_f32","v_pk_fmac_f16","v_dot2c_f32_bf16","v_mac_f32"):
                s.dst=R[0]; s.src=sum(R,[])
            elif "_co_" in op:
                s.dst=R[0]+R[1]; s.src=sum(R[2:],[])
            else:
                s.dst=R[0]; s.src=sum(R[1:],[])
            s.dpp = ("row_" in mods or "quad_perm" in mods or "wave_" in mods or "_dpp" in s.op or "row_bcast" in mods)
            if s.dpp: s.src+=R[0]
        elif op.startswith("ds_"):
            s.kind="ds"
            if op.startswith("ds_read") or op.startswith("ds_bpermute") or op.startswith("ds_swizzle") or op.startswith("ds_permute"):
                s.dst=R[0]; s.src=sum(R[1:],[])
            else: s.src=sum(R,[])
        elif op.startswith("buffer_") or op.startswith("global_"):
            s.kind="vmem"; s.lds=(" lds" in (mods+" ")) or rest.rstrip().endswith("lds")
            if op in("buffer_inv","buffer_wbl2"): return
            if "load" in op and not s.lds:
                s.dst=R[0]; s.src=sum(R[1:],[])
            else:
                s.src=sum(R,[])
                if "atomic" in op and ("glc" in mods or "sc0" in mods): s.dst=R[0]
            s.wide = ("store" in op and ("x4" in op or "x3" in op))
            if s.wide: s.data=R[0]
        elif op.startswith("s_"):
            s.kind="salu"
            if op.startswith("s_cmp") or op.startswith("s_cbranch") or op in("s_branch","s_waitcnt","s_barrier","s_endpgm","s_setprio","s_sleep","s_bitcmp1_b32","s_bitcmp0_b32"):
                s.src=sum(R,[])
                if op in("s_cbranch_vccnz","s_cbranch_vccz"): s.src=[("s","vcc")]
            elif op.startswith("s_load") or op.startswith("s_memtime") or op.startswith("s_memrealtime"):
                s.kind="smem"; s.dst=R[0]; s.src=sum(R[1:],[])
            else:
                s.dst=R[0] if R else []; s.src=sum(R[1:],[])
                if "saveexec" in op: s.dst=s.dst+[("s","exec")]
def ov(a,b):
    sb=set(b)
    return any(x in sb for x in a)
def isv(r): return [x for x in r if x[0] in "va"]
def iss(r): return [x for x in r if x[0]=="s"]
def lint(lines, maxprint=20):
    ins=[I(l) for l in lines]
    errs=[]
    real=[(n,i) for n,i in enumerate(ins) if i.kind!="none"]
    for k,(n,c) in enumerate(real):
        dist=0
        for back in range(k-1,max(-1,k-24),-1):
            pn,p=real[back]
            if p.op in("s_branch","s_endpgm","s_setpc_b64"): break
            need=0; why=""
            if p.kind=="valu":
                pv=isv(p.dst); ps=iss(p.dst)
                if c.kind=="mfma" and ov(pv,c.src): need,why=2,"valu->mfma"
                if c.kind=="mfma" and ("s","exec") in ps: need,why=4,"valu exec->mfma"
                if c.kind=="valu":
                    if p.bop in TRANS and c.bop not in TRANS and ov(pv,c.src): need,why=max(need,1),"trans->valu"
                    if (c.bop.startswith("v_permlane") or c.dpp) and ov(pv,c.src): need,why=max(need,2),"valu->permlane/dpp"
                    if c.bop in("v_readfirstlane_b32","v_readlane_b32") and ov(pv,c.src): need,why=max(need,1),"valu->readlane"
                    if ov(ps,iss(c.src)): need,why=max(need,2),"valu sgpr->valu"
                    if c.dpp and ("s","exec") in ps: need,why=max(need,5),"exec->dpp"
                if c.kind=="vmem" and ov(ps,iss(c.src)): need,why=max(need,5),"valu sgpr->vmem"
            if p.kind=="salu" and ("s","m0") in p.dst and c.kind=="vmem" and getattr(c,"lds",False): need,why=1,"m0->ldsdma"
            if p.kind=="mfma":
                big = 8 if p.passes==4 else 12
                if c.kind=="valu" and (ov(p.dst,isv(c.src)) or ov(p.dst,isv(c.dst))): need,why=big,"mfmaD->valu"
                if c.kind in("vmem","ds") and (ov(p.dst,isv(c.src)) or ov(p.dst,isv(c.dst))): need,why=big,"mfmaD->mem"
                if c.kind=="mfma":
                    if ov(p.dst,c.A+c.B): need,why=big,"mfmaD->AB"
                    elif ov(p.dst,c.C) and not (p.dst==c.C and p.passes==c.passes): need,why=(6 if p.passes==4 else 10),"mfmaD->C partial"
                    elif ov(p.dst,c.dst) and p.dst!=c.C: need,why=max(need,(6 if p.passes==4 else 10)),"mfmaD->D waw"
                if c.kind=="valu" and ov(p.C,isv(c.dst)): need,why=max(need,3 if p.passes==4 else 7),why or "mfmaC war"
            if p.kind=="vmem" and getattr(p,"wide",False) and c.kind=="valu" and ov(p.data,isv(c.dst)): need,why=max(need,2),"store war"
            if need>dist:
                errs.append(f"line {n}: [{c.line.strip()}] needs {need} ws after line {pn} [{p.line.strip()}] ({why}), has {dist}")
            dist+=p.ws
            if dist>=12: break
    for e in errs[:maxprint]: print("HAZARD",e)
    if len(errs)>maxprint: print(f"... {len(errs)} hazards total")
    return errs

class Sched:
    def __init__(s, cap=2):
        s.M=[]; s.pre=[]; s.fill=[]; s.cap=[]; s.cap0=cap
    def mfma(s, text):
        s.M.append(text); s.pre.append([]); s.fill.append([]); s.cap.append(s.cap0); return len(s.M)-1
    def place(s, pos, ins, cost=1, force=False):
        p=max(0,pos); n=len(s.M)
        while p<n and s.cap[p]<cost: p+=1
        if p>=n:
            p=n-1 if not force else min(pos,n-1)
        s.fill[p].append(ins); s.cap[p]-=cost
        return p
    def spread(s, items, lo, hi):
        pos=lo; tot=len(items)
        for k,(ins,c) in enumerate(items):
            want=lo+int(k*(hi-lo)/max(1,tot))
            pos=s.place(max(pos,want),ins,c)
        return pos
    def emit(s,A):
        for i,m in enumerate(s.M):
            for x in s.pre[i]: A(x)
            A(m)
            for x in s.fill[i]: A(x)

def kernel_footer(name, vgpr=512, acc=256):
    return f""".amdhsa_kernel {name}
  .amdhsa_next_free_vgpr {vgpr}
  .amdhsa_next_free_sgpr 102
  .amdhsa_accum_offset {acc}
  .amdhsa_group_segment_fixed_size 0
  .amdhsa_kernarg_size 104
  .amdhsa_user_sgpr_count 2
  .amdhsa_user_sgpr_kernarg_segment_ptr 1
  .amdhsa_system_sgpr_workgroup_id_x 1
.end_amdhsa_kernel"""
```

```python
import sys
sys.path.insert(0,"gen"); sys.path.insert(0,"dev")
from asmlib import *
import k1
NAME="gated_mix__compressed_kv_cla__dense_activation_relu__prompt"
def build(parts, out):
    A=Asm()
    hdr=open(f"cdna_kernels/{NAME}.s.ref").read().split("\n")
    for l in hdr:
        if l.startswith("; Override") or l.startswith("; grid=") or l.startswith("; @launch") : continue
        if l.startswith(";"): A(l)
        else: break
    for (kn,grid,lds,fn) in parts: A(f"; @launch kernel={kn} grid=({grid},1,1) block=(256,1,1) lds={lds}")
    A('.amdgcn_target "amdgcn-amd-amdhsa--gfx950"\n.text')
    for (kn,grid,lds,fn) in parts: fn(A,kn)
    A('.section .rodata,"a"')
    for (kn,grid,lds,fn) in parts: A(".p2align 6"); A(kernel_footer(kn))
    lint(A.L)
    open(out,"w").write(A.text())
    print(out, len(A.text()), "bytes")
if __name__=="__main__":
    import build as B, k2
    parts=[("k1_kernel",256,163840,k1.k1),("k2_kernel",256,131072,k2.k2),("k3_kernel",448,0,k2.k3)]
    build(parts,"t_all.s")
    print(B.build("t_all.s","k1_kernel",13))
```

```python
from asmlib import *
WS_KV=0x100000
WS_GATE=0x2200000
WS_PART=0x2300000
WS_SIZE=0x10000000
def srd(A,d,nrec):
    A(f"s_mov_b32 s{d+2}, {nrec}\ns_mov_b32 s{d+3}, 0x20000")
WS_STAMP=0x8000000
STAMPS=True
def stamp(A,i):
    if STAMPS: A(f"s_memrealtime s[{60+2*i}:{61+2*i}]")
def stamp_store(A,n,kidx,lbl):
    if not STAMPS: return
    A(f"s_waitcnt lgkmcnt(0)\ns_cmp_lg_u32 s24, 0\ns_cbranch_scc1 {lbl}")
    A(f"s_lshl_b32 s58, s2, 6\ns_add_u32 s58, s58, {WS_STAMP+kidx*16384}\nv_mov_b32 v2, s58")
    A("s_mov_b64 exec, 1")
    for i in range(n):
        A(f"v_mov_b32 v3, s{60+2*i}\nbuffer_store_dword v3, v2, s[12:15], 0 offen offset:{4*i}")
    A(f"s_mov_b64 exec, -1\n{lbl}:")
OPT={}
def k1(A, name="k1_kernel"):
    A(f".globl {name}\n.p2align 8\n.type {name},@function\n{name}:")
    A(f"s_cmp_ge_u32 s2, 256\ns_cbranch_scc1 K1_end")
    stamp(A,0)
    A("s_load_dwordx2 s[4:5], s[0:1], 8")
    A("s_load_dwordx2 s[32:33], s[0:1], 24")
    A("s_load_dwordx2 s[34:35], s[0:1], 32")
    A("s_load_dwordx2 s[12:13], s[0:1], 96")
    A("s_load_dwordx2 s[16:17], s[0:1], 0")
    A("s_load_dwordx2 s[20:21], s[0:1], 72")
    A("v_and_b32 v1, 63, v0\nv_lshrrev_b32 v2, 6, v0")
    A("s_and_b32 s36, s2, 7\ns_lshr_b32 s37, s2, 3")
    A("v_readfirstlane_b32 s24, v2")
    A("s_lshr_b32 s38, s37, 3\ns_and_b32 s27, s37, 7")
    A("s_and_b32 s39, s38, 1\ns_lshl_b32 s25, s36, 1\ns_add_u32 s25, s25, s39")
    A("s_lshr_b32 s26, s38, 1")
    srd(A,4,4194304); srd(A,12,WS_SIZE); srd(A,16,1835008); srd(A,20,896)
    A("s_waitcnt lgkmcnt(0)")
    A("s_cmp_eq_u32 s26, 0\ns_cselect_b32 s8, s32, s34\ns_cselect_b32 s9, s33, s35")
    srd(A,8,8388608)
    vC=[4,5,6,7]; vW=[8,9,10,11]; wb=list(range(12,20)); cb=[[20,21],[22,23]]
    vL16=24
    A("v_lshlrev_b32 v24, 4, v1")
    A("s_lshl_b32 s40, s27, 8\ns_lshl_b32 s41, s24, 6\ns_add_u32 s40, s40, s41\ns_lshl_b32 s40, s40, 11")
    A("v_lshrrev_b32 v25, 3, v1\nv_lshlrev_b32 v25, 11, v25\nv_add_u32 v25, s40, v25")
    A("v_and_b32 v26, 7, v1\nv_lshrrev_b32 v27, 4, v1\nv_xor_b32 v26, v26, v27")
    for j in range(4):
        if j&1: A("v_xor_b32 v27, 4, v26")
        else: A("v_mov_b32 v27, v26")
        A(f"v_lshlrev_b32 v27, 4, v27\nv_add_u32 v27, v27, v25\nv_add_u32 v{vC[j]}, {j*(16384-1024)}, v27")
    A("v_lshrrev_b32 v25, 5, v1")
    A("v_and_b32 v26, 31, v1\nv_lshrrev_b32 v26, 1, v26")
    A("v_and_b32 v28, 1, v1")
    A("s_and_b32 s41, s24, 1\ns_lshl_b32 s41, s41, 2")
    A("s_lshl_b32 s42, s24, 16\ns_lshl_b32 s43, s25, 9\ns_add_u32 s42, s42, s43")
    for j in range(4):
        A(f"v_add_u32 v27, {2*j}, v25\nv_and_b32 v29, 3, v27\nv_or_b32 v29, s41, v29")
        A(f"v_xor_b32 v29, v29, v26\nv_lshlrev_b32 v29, 1, v29\nv_or_b32 v29, v29, v28\nv_lshlrev_b32 v29, 4, v29")
        A(f"v_lshlrev_b32 v27, 13, v27\nv_add_u32 v27, v27, v29\nv_add_u32 v27, s42, v27")
        if j: A(f"v_subrev_u32 v{vW[j]}, {j*1024}, v27")
        else: A(f"v_mov_b32 v{vW[j]}, v27")
    A("s_lshl_b32 s28, s24, 13\ns_lshl_b32 s29, s24, 12\ns_add_u32 s29, s29, 98304")
    def dma_c(q,half):
        slot=q%3
        out=[f"s_add_u32 m0, s28, {slot*32768+half*4096}", f"s_mov_b32 s30, {q*128+half*65536}"]
        out+=[f"buffer_load_dwordx4 v{vC[j]}, s[4:7], s30 offen offset:{j*1024} lds" for j in range(4)]
        return out
    def dma_w(p):
        slot=p%4
        out=[f"s_add_u32 m0, s29, {slot*16384}", f"s_mov_b32 s31, {p*32*8192}"]
        out+=[f"buffer_load_dwordx4 v{vW[j]}, s[8:11], s31 offen offset:{j*1024} lds" for j in range(4)]
        return out
    A("s_lshl_b32 s44, s2, 3\ns_lshl_b32 s42, s24, 1\ns_add_u32 s44, s44, s42")
    A("s_mul_i32 s42, s44, 896")
    A("v_add_u32 v25, s42, v24\nv_cmp_gt_u32 vcc, 56, v1\nv_mov_b32 v26, 0x7ff00000\ns_nop 0")
    A("v_cndmask_b32 v25, v26, v25, vcc")
    A("buffer_load_dwordx4 v[32:35], v25, s[16:19], 0 offen")
    A("buffer_load_dwordx4 v[36:39], v25, s[16:19], 0 offen offset:896")
    A("buffer_load_dwordx4 v[40:43], v24, s[20:23], 0 offen")
    for x in dma_c(0,0)+dma_c(0,1)+dma_w(0)+dma_w(1)+dma_c(1,0)+dma_c(1,1)+dma_w(2)+dma_w(3)+dma_c(2,0): A(x)
    A("v_lshrrev_b32 v25, 4, v1\nv_and_b32 v26, 15, v1")
    A("v_lshrrev_b32 v27, 2, v26\nv_and_b32 v28, 3, v26")
    A("v_lshlrev_b32 v29, 3, v25\nv_add_u32 v29, v29, v27\nv_lshlrev_b32 v29, 9, v29")
    A("v_lshlrev_b32 v28, 3, v28\nv_add_u32 v29, v29, v28")
    A("v_and_b32 v30, 1, v25\nv_lshlrev_b32 v30, 2, v30\nv_or_b32 v30, v30, v27")
    A("s_lshr_b32 s41, s24, 1\ns_lshl_b32 s41, s41, 8\ns_add_u32 s41, s41, 98304")
    A("v_add_u32 v29, s41, v29")
    for c in range(8):
        A(f"v_xor_b32 v31, {c}, v30\nv_lshlrev_b32 v31, 5, v31\nv_add_u32 v{wb[c]}, v29, v31")
    A("v_lshrrev_b32 v27, 1, v26\nv_xor_b32 v27, v27, v25")
    A("s_and_b32 s41, s24, 1\ns_lshl_b32 s41, s41, 14")
    A("v_lshlrev_b32 v28, 7, v26\nv_add_u32 v28, s41, v28")
    for ks in range(2):
        A(f"v_xor_b32 v29, {4*ks}, v27\nv_lshlrev_b32 v29, 4, v29\nv_add_u32 v{cb[ks][0]}, v29, v28\nv_add_u32 v{cb[ks][1]}, 0x10000, v{cb[ks][0]}")
    A("s_waitcnt vmcnt(36)")
    for k in range(4):
        A(f"v_lshlrev_b32 v{44+2*k}, 16, v{40+k}\nv_and_b32 v{45+2*k}, 0xffff0000, v{40+k}")
    A("v_mov_b32 v60, 0\nv_mov_b32 v61, 0")
    for r in range(2):
        for k in range(4):
            A(f"v_lshlrev_b32 v52, 16, v{32+4*r+k}\nv_and_b32 v53, 0xffff0000, v{32+4*r+k}")
            A(f"v_fmac_f32 v{60+r}, v52, v{44+2*k}\nv_fmac_f32 v{60+r}, v53, v{45+2*k}")
    A("v_lshlrev_b32 v54, 2, v1")
    for m in (1,2,4,8,16,32):
        A(f"v_xor_b32 v55, {m*4}, v54\nds_bpermute_b32 v56, v55, v60\nds_bpermute_b32 v57, v55, v61\ns_waitcnt lgkmcnt(0)")
        A("v_add_f32 v60, v60, v56\nv_add_f32 v61, v61, v57")
    A("v_mul_f32 v60, 0xbfb8aa3b, v60\nv_mul_f32 v61, 0xbfb8aa3b, v61\nv_exp_f32 v60, v60\nv_exp_f32 v61, v61\ns_nop 0")
    A("v_add_f32 v60, 1.0, v60\nv_add_f32 v61, 1.0, v61\nv_rcp_f32 v60, v60\nv_rcp_f32 v61, v61")
    A(f"s_lshl_b32 s41, s44, 2\ns_add_u32 s41, s41, {WS_GATE}\nv_mov_b32 v62, s41")
    A("s_mov_b64 exec, 1\nbuffer_store_dwordx2 v[60:61], v62, s[12:15], 0 offen\ns_mov_b64 exec, -1")
    A("s_waitcnt vmcnt(20)\ns_barrier")
    def acc(i,j):
        n=i*8+j
        return (f"v[{32+4*n}:{35+4*n}]", 32+4*n, "v") if n<56 else (f"a[{128+4*(n-56)}:{131+4*(n-56)}]",128+4*(n-56),"a")
    def reads(p, typ):
        st=64*(p&1)
        Wd = st if typ==0 else st+32
        Cd = st+32 if typ==0 else st
        q=p>>1; ks=p&1; slot=q%3
        out=[]
        for f in range(8):
            base=cb[ks][1 if slot==2 else 0]; off=(32768 if slot==1 else 0)+f*2048
            out.append(f"ds_read_b128 a[{Cd+4*f}:{Cd+4*f+3}], v{base} offset:{off}")
            o=(p%4)*16384
            out.append(f"ds_read_b64_tr_b16 a[{Wd+4*f}:{Wd+4*f+1}], v{wb[f]} offset:{o}")
            out.append(f"ds_read_b64_tr_b16 a[{Wd+4*f+2}:{Wd+4*f+3}], v{wb[f]} offset:{o+2048}")
        return out
    stamp(A,1)
    if STAMPS: A("s_memtime s[82:83]")
    A("s_cmp_lg_u32 s26, 0\ns_cbranch_scc1 K1_V")
    for typ in range(2):
        if typ==1: A("K1_V:")
        for x in reads(0,typ): A(x)
        A("s_waitcnt lgkmcnt(0)")
        for p in range(32):
            st=64*(p&1)
            S=Sched()
            for i in range(8):
                for j in range(8):
                    d,_,_=acc(i,j)
                    c = d if p>0 else "0"
                    S.mfma(f"v_mfma_f32_16x16x32_bf16 {d}, a[{st+4*i}:{st+4*i+3}], a[{st+32+4*j}:{st+32+4*j+3}], {c}")
            D=[]
            if p+4<32: D+=dma_w(p+4)
            if p%2==0:
                q=p//2+2
                if q<16: D+=dma_c(q,1)
            else:
                q=(p-1)//2+3
                if q<16: D+=dma_c(q,0)
            if OPT.get("nodma"): D=[]
            if OPT.get("samedma"): D=[x if not x.startswith("s_mov_b32 s3") else x.split(",")[0]+", 0" for x in D]
            if p+1<32 and not OPT.get("noread"):
                rd=reads(p+1,typ)
                if OPT.get("notr"): rd=[x.replace("ds_read_b64_tr_b16","ds_read_b64") for x in rd]
                S.spread([(x,1) for x in rd],0,46)
            S.spread([(x,1) for x in D],2,60)
            if p%4==0 and p>0: stamp(A,3+p//4)
            S.emit(A)
            if p+1<32:
                def nl(pp):
                    if pp<0: return None
                    n=0
                    if pp+4<32: n+=4
                    q=pp//2+2 if pp%2==0 else (pp-1)//2+3
                    if q<16: n+=4
                    return n
                n=nl(p)+(nl(p-1) if p>0 else 8)
                A(f"s_waitcnt vmcnt({n}) lgkmcnt(0)\ns_barrier")
        stamp(A,2)
        if STAMPS: A("s_memtime s[86:87]\ns_waitcnt lgkmcnt(0)\ns_sub_u32 s82, s86, s82\ns_mov_b32 s84, 0\ns_mov_b32 s86, 0\ns_mov_b32 s88, 0")
        A("s_nop 7")
        A(f"s_lshl_b32 s40, s25, 21\ns_lshl_b32 s41, s27, 18\ns_add_u32 s40, s40, s41\ns_add_u32 s40, s40, {WS_KV}")
        A("s_and_b32 s41, s24, 1\ns_lshl_b32 s41, s41, 17\ns_add_u32 s40, s40, s41")
        A("s_lshr_b32 s41, s24, 1")
        if typ==0: A("s_lshl_b32 s41, s41, 12\ns_add_u32 s40, s40, s41")
        else: A("s_lshl_b32 s41, s41, 13\ns_add_u32 s40, s40, s41\ns_add_u32 s40, s40, 16384")
        def pack(t,j):
            d,r0,_=acc(2*t,j); e,r1,c1=acc(2*t+1,j)
            o=[]
            if c1=="a":
                for k in range(4): o.append(f"v_accvgpr_read_b32 v{26+k}, a{r1+k}")
                r1=26
            o.append(f"v_cvt_pk_bf16_f32 v{r0}, v{r0}, v{r0+1}")
            o.append(f"v_cvt_pk_bf16_f32 v{r0+1}, v{r0+2}, v{r0+3}")
            o.append(f"v_cvt_pk_bf16_f32 v{r0+2}, v{r1}, v{r1+1}")
            o.append(f"v_cvt_pk_bf16_f32 v{r0+3}, v{r1+2}, v{r1+3}")
            return o,r0
        if typ==0:
            for j in range(8):
                A(f"s_add_u32 s41, s40, {(j>>1)*32768+(j&1)*8192}")
                for t in range(4):
                    o,r0=pack(t,j)
                    for x in o: A(x)
                    A(f"buffer_store_dwordx4 v[{r0}:{r0+3}], v{vL16}, s[12:15], s41 offen offset:{t*1024}")
        else:
            for t in range(4):
                for j in range(8):
                    if j%4==0: A(f"s_add_u32 s41, s40, {t*32768+(j>>2)*4096}")
                    o,r0=pack(t,j)
                    for x in o: A(x)
                    A(f"buffer_store_dwordx4 v[{r0}:{r0+3}], v{vL16}, s[12:15], s41 offen offset:{(j&3)*1024}")
        if STAMPS:
            A("s_waitcnt vmcnt(0)"); stamp(A,3); stamp_store(A,15,0,f"K1_st{typ}")
        A("s_endpgm")
    A("K1_end:\ns_endpgm")
```

```python
from asmlib import *
from stream import *
import k1
from k1 import srd, WS_GATE, WS_PART, WS_SIZE, WS_STAMP
OPT={}
STB=66
def stamp(i): return f"s_memrealtime s[{STB+2*i}:{STB+2*i+1}]" if k1.STAMPS else None
SB=[16,32]; PB=[48,56]; ET=64; NEGM=72; LB=[80,84]; OB=128
WB=[88,96]
OBASE=[116,120]
VWQ=104; VW1=108; VWO=112
VLDS=[3,4]; VK=5; VV=6; VL16=7; VG=[8,9]; VD0=10; VD=11; VNINF=12; VT=13
XF=128; HF=128; QF=0
FACC=16
def O(db,qb): return OB+8*db+4*qb
def slotaddr(slot): return (slot>>2), (slot&3)*16384
def dma_lines(vregs, srdb, slot, soff, comp=True):
    out=[f"s_add_u32 m0, s32, {slot*16384}"]
    if isinstance(soff,int):
        out.append(f"s_mov_b32 s35, {soff}"); so="s35"
    else:
        so=soff
        out.append("s_nop 0")
    for j in range(4):
        v=vregs[j] if isinstance(vregs,list) else vregs
        out.append(f"buffer_load_dwordx4 v{v}, s[{srdb}:{srdb+3}], {so} offen offset:{j*1024} lds")
    return out
def dma_wq(it,slot): return dma_lines([VWQ+j for j in range(4)],4,slot,it*32*8192)
def dma_w1(it,slot): return dma_lines([VW1+j for j in range(4)],8,slot,it*64*3584)
def dma_out(sl,kind,slot):
    if kind<2: pre=[f"s_add_u32 s35, s38, {kind*128*896+sl*128}"]; b=16
    else: pre=[f"s_add_u32 s35, s39, {sl*128}"]; b=20
    out=[f"s_add_u32 m0, s32, {slot*16384}"]+pre
    for j in range(4): out.append(f"buffer_load_dwordx4 v{VWO+j}, s[{b}:{b+3}], s35 offen offset:{j*1024} lds")
    return out
def dma_kv(kslot,vslot,adv=True):
    out=[]
    if kslot is not None:
        out.append(f"s_add_u32 m0, s32, {kslot*16384}"); out.append("s_nop 0" if False else None)
        out+= [f"buffer_load_dwordx4 v{VK}, s[12:15], s33 offen offset:{j*1024} lds" for j in range(4)]
    if vslot is not None:
        out.append(f"s_add_u32 m0, s32, {vslot*16384}")
        out+= [f"buffer_load_dwordx4 v{VV}, s[12:15], s33 offen offset:{j*1024} lds" for j in range(4)]
    if adv: out.append("s_add_u32 s33, s33, 0x8000")
    return [x for x in out if x]
def nvm(lines): return sum(1 for x in lines if x.startswith("buffer_"))
def tr_frag_w(slot,c,extra):
    hi,off=slotaddr(slot); b=WB[hi]+c
    return [f"ds_read_b64_tr_b16 {{d2a}}, v{b} offset:{off+extra}", f"ds_read_b64_tr_b16 {{d2b}}, v{b} offset:{off+extra+2048}"]
def tr_frag_o(slot,mb,ks):
    hi,off=slotaddr(slot); b=OBASE[hi]+mb
    return [f"ds_read_b64_tr_b16 {{d2a}}, v{b} offset:{off+ks*4096}", f"ds_read_b64_tr_b16 {{d2b}}, v{b} offset:{off+ks*4096+2048}"]
def lin_frag(slot,f):
    hi,off=slotaddr(slot)
    return [f"ds_read_b128 {{d4}}, v{VLDS[hi]} offset:{off+f*1024}"]
MF="v_mfma_f32_16x16x32_bf16"
def add_wq(ph,slot,ks):
    for db in range(16):
        f=ph.frag(tr_frag_w(slot,db&7,(db>>3)*256))
        for qb in range(2):
            d=vr(O(db,qb),4); x=ar(XF+8*ks+4*qb,4)
            ph.mfma(f,f"{MF} {d}, {{A}}, {x}, {d if ks else 0}")
def add_w1(ph,slot,it):
    for k2 in range(2):
        ks=2*it+k2
        for fb in range(7):
            f=ph.frag(tr_frag_w(slot,fb,k2*256))
            for qb in range(2):
                d=vr(FACC+8*fb+4*qb,4); x=ar(XF+8*ks+4*qb,4)
                ph.mfma(f,f"{MF} {d}, {{A}}, {x}, {d if ks else 0}")
def add_S(ph,slot,dst,cinit):
    for kvb in range(2):
        for s in range(8):
            f=ph.frag(lin_frag(slot,kvb*8+s))
            for qb in range(2):
                d=vr(dst+8*kvb+4*qb,4)
                c=d if s else (vr(NEGM+4*qb,4) if cinit else "0")
                ph.mfma(f,f"{MF} {d}, {{A}}, {ar(QF+8*s+4*qb,4)}, {c}")
def add_PV(ph,slot,pb):
    for db in range(16):
        f=ph.frag(lin_frag(slot,db))
        for qb in range(2):
            d=vr(O(db,qb),4)
            ph.mfma(f,f"{MF} {d}, {{A}}, {vr(pb+4*qb,4)}, {d}")
def add_out(ph,slot,kind,acc,first):
    for ks in range(4):
        for mb in range(4):
            f=ph.frag(tr_frag_o(slot,mb,ks))
            for qb in range(2):
                d=vr(acc+8*mb+4*qb,4)
                if kind<2:
                    s=4*kind+ks; B=vr(OB+16*s+4*qb,4)
                else: B=ar(HF+8*ks+4*qb,4)
                c=d if not (first and ks==0) else "0"
                ph.mfma(f,f"{MF} {d}, {{A}}, {B}, {c}")
def mask_ops(sb,qbs=(0,1)):
    out=[];
    masks={}
    k=0
    for dlt in (-1,0,1):
        for r in range(4):
            masks[(dlt,r)]=40+2*k; k+=1
    for dlt in (-1,0,1):
        for r in range(4):
            m=masks[(dlt,r)]
            out.append((f"v_cmp_le_i32_e64 s[{m}:{m+1}], {r+16*dlt}, v{VD}",1))
    for qb in qbs:
        for kvb in range(2):
            for r in range(4):
                m=masks[(kvb-qb,r)]; v=sb+8*kvb+4*qb+r
                out.append((f"v_cndmask_b32_e64 v{v}, v{VNINF}, v{v}, s[{m}:{m+1}]",1))
    return out
def softmax_ops(p):
    sb=SB[p]; pb=PB[p]; ln=LB[p]; lo=LB[1-p]
    out=[]
    for qb in range(2):
        for e in range(8):
            src=sb+(e//4)*8+4*qb+(e%4)
            out.append((f"v_exp_f32 v{ET+e}, v{src}",2))
            if e>=2 and e%2==0:
                k=e-2
                out+=pairops(k,qb,ln,lo,pb)
        out.append(("s_nop 0",1))
        out+=pairops(6,qb,ln,lo,pb)
    return out
def pairops(k,qb,ln,lo,pb):
    a=vr(ln+2*qb,2); src=vr(lo+2*qb,2) if k==0 else a
    return [(f"v_pk_add_f32 {a}, {src}, {vr(ET+k,2)}",1),(f"v_cvt_pk_bf16_f32 v{pb+4*qb+k//2}, v{ET+k}, v{ET+k+1}",1)]
def check_ops(p):
    ln=LB[p]
    return [(f"v_pk_add_f32 v[14:15], {vr(ln,2)}, {vr(ln+2,2)}",1),("v_add_f32 v14, v14, v15",1),("v_cmp_lt_f32 vcc, s37, v14",1)]
def xmax(A,v,t,op="v_max_f32"):
    A(f"v_mov_b32 v{t}, v{v}\ns_nop 1\nv_permlane32_swap_b32 v{v}, v{t}\ns_nop 1\n{op} v{v}, v{v}, v{t}")
    A(f"v_mov_b32 v{t}, v{v}\ns_nop 1\nv_permlane16_swap_b32 v{v}, v{t}\ns_nop 1\n{op} v{v}, v{v}, v{t}")
def rowmax(A,sb,qb,dst,t):
    s=[sb+(e//4)*8+4*qb+(e%4) for e in range(8)]
    A(f"v_max3_f32 v{dst}, v{s[0]}, v{s[1]}, v{s[2]}\nv_max3_f32 v{t}, v{s[3]}, v{s[4]}, v{s[5]}")
    A(f"v_max3_f32 v{dst}, v{dst}, v{s[6]}, v{s[7]}\nv_max_f32 v{dst}, v{dst}, v{t}")
    xmax(A,dst,t)
def rare(A,lbl,p,hasSnext,back):
    sb=SB[p]; sn=SB[1-p]; pb=PB[p]; ln=LB[p]; lo=LB[1-p]
    A(f"{lbl}:\ns_nop 7\ns_nop 7")
    for qb in range(2):
        rowmax(A,sb,qb,13,14)
        A(f"v_max_f32 v13, 0, v13")
        A(f"v_sub_f32 v14, 0, v13\nv_exp_f32 v15, v14\ns_nop 0")
        for r in range(4): A(f"v_add_f32 v{NEGM+4*qb+r}, v{NEGM+4*qb+r}, v14")
        for kvb in range(2):
            for r in range(4):
                A(f"v_add_f32 v{sb+8*kvb+4*qb+r}, v{sb+8*kvb+4*qb+r}, v14")
                if hasSnext: A(f"v_add_f32 v{sn+8*kvb+4*qb+r}, v{sn+8*kvb+4*qb+r}, v14")
        for db in range(16):
            for r in range(4): A(f"v_mul_f32 v{O(db,qb)+r}, v{O(db,qb)+r}, v15")
        A(f"v_mul_f32 v{lo+2*qb}, v{lo+2*qb}, v15\nv_mul_f32 v{lo+2*qb+1}, v{lo+2*qb+1}, v15")
    for ins,c in softmax_ops(p): A(ins)
    A(f"s_nop 1\ns_branch {back}")
RARE=[]
def attn_phase(u,hasS,hasPV,masked,zinit,dma,name):
    p=u&1; pair=(u+3)%4
    ph=Phase(name)
    if hasS: add_S(ph,2*pair,SB[1-p],True)
    if hasPV: add_PV(ph,2*pair+1,PB[1-p])
    V=[]
    if masked:
        V.append((f"v_subrev_u32 v{VD}, {32*u}, v{VD0}",1))
        V+=mask_ops(SB[p])
    V+=softmax_ops(p)
    V+=check_ops(p)
    ph.valu=V
    if zinit:
        for r in range(OB,OB+128,2): ph.valu.append((f"v_pk_mul_f32 v[{r}:{r+1}], 0, 0" if False else f"v_mov_b64 v[{r}:{r+1}], 0",1))
    ph.dma=dma
    lbl=f"RARE_{name}"; back=f"BACK_{name}"
    ph.post=["s_nop 0",f"s_cbranch_vccnz {lbl}",f"{back}:"]
    RARE.append((lbl,p,hasS,back))
    return ph

def k2(A,name="k2_kernel"):
    RARE.clear()
    from k1 import WS_KV
    A(f".globl {name}\n.p2align 8\n.type {name},@function\n{name}:")
    A("s_cmp_ge_u32 s2, 256\ns_cbranch_scc1 K2_end")
    if k1.STAMPS: A(stamp(0))
    for d,o in ((4,16),(8,56),(12,96),(16,40),(20,64),(28,0)): A(f"s_load_dwordx2 s[{d}:{d+1}], s[0:1], {o}")
    A("v_and_b32 v1, 63, v0\nv_lshrrev_b32 v2, 6, v0")
    A("s_and_b32 s36, s2, 7\ns_lshr_b32 s35, s2, 3")
    A("v_readfirstlane_b32 s24, v2")
    A("s_and_b32 s25, s35, 1\ns_lshl_b32 s36, s36, 1\ns_add_u32 s25, s25, s36")
    A("s_lshr_b32 s26, s35, 1")
    if OPT.get("rev"): A("s_sub_u32 s26, 15, s26")
    A("s_lshl_b32 s27, s26, 7")
    srd(A,4,448*8192); srd(A,8,448*3584); srd(A,12,WS_SIZE); srd(A,16,4096*896); srd(A,20,1792*896); srd(A,28,2048*896)
    A("s_lshl_b32 s32, s24, 12")
    A("s_mov_b32 s37, 0x53800000")
    A("s_mul_i32 s38, s25, %d\ns_mul_i32 s39, s25, %d"%(256*896,112*896))
    A("s_waitcnt lgkmcnt(0)")
    A(f"v_lshlrev_b32 v{VL16}, 4, v1")
    A("v_lshrrev_b32 v13, 4, v1\nv_and_b32 v14, 15, v1")
    A("s_lshl_b32 s35, s24, 5\ns_add_u32 s35, s35, s27")
    A("v_add_u32 v15, s35, v14\nv_mul_u32_u24 v2, 896, v15\nv_lshlrev_b32 v16, 4, v13\nv_add_u32 v2, v2, v16")
    A("s_mov_b32 s36, 14336")
    for ks in range(14):
        for qb in range(2):
            A(f"buffer_load_dwordx4 {ar(XF+8*ks+4*qb,4)}, v2, s[28:31], {'s36' if qb else '0'} offen offset:{ks*64}")
    A(f"v_lshlrev_b32 v15, 2, v15\nv_add_u32 v15, {WS_GATE}, v15")
    A(f"buffer_load_dword v{VG[0]}, v15, s[12:15], 0 offen\nbuffer_load_dword v{VG[1]}, v15, s[12:15], 0 offen offset:64")
    A("v_lshrrev_b32 v16, 5, v1\nv_and_b32 v17, 1, v1")
    A("v_and_b32 v18, 31, v1\nv_lshrrev_b32 v18, 1, v18")
    A("v_and_b32 v19, 7, v18")
    A("v_lshrrev_b32 v20, 4, v1\nv_and_b32 v20, 1, v20")
    A("s_and_b32 s35, s24, 1\ns_lshl_b32 s35, s35, 2")
    A("s_lshl_b32 s36, s24, 3")
    A("s_lshl_b32 s40, s25, 9\ns_mul_i32 s41, s25, 224")
    for j in range(4):
        A(f"v_add_u32 v21, {2*j}, v16\nv_and_b32 v22, 3, v21\nv_or_b32 v22, s35, v22")
        A(f"v_add_u32 v21, s36, v21")
        A(f"v_xor_b32 v23, v22, v18\nv_lshlrev_b32 v23, 1, v23\nv_or_b32 v23, v23, v17\nv_lshlrev_b32 v23, 4, v23")
        A(f"v_lshlrev_b32 v24, 13, v21\nv_add_u32 v24, v24, v23\nv_add_u32 v24, s40, v24")
        A(f"v_subrev_u32 v{VWQ+j}, {j*1024}, v24" if j else f"v_mov_b32 v{VWQ+j}, v24")
        A(f"v_xor_b32 v23, v22, v19\nv_lshlrev_b32 v23, 1, v23\nv_or_b32 v23, v23, v17\nv_lshlrev_b32 v23, 4, v23")
        A(f"v_lshlrev_b32 v24, 5, v20\nv_add_u32 v24, v24, v21\nv_mul_u32_u24 v24, 3584, v24\nv_add_u32 v24, v24, v23\nv_add_u32 v24, s41, v24")
        A(f"v_add_u32 v{VW1+j}, {0x100000-j*1024}, v24\nv_subrev_u32 v{VW1+j}, 0x100000, v{VW1+j}" if j else f"v_mov_b32 v{VW1+j}, v24")
    pro=dma_wq(0,0)+dma_wq(1,1)+dma_wq(2,2)+dma_wq(3,3)+dma_wq(4,4)+dma_wq(5,5)
    for x in pro: A(x)
    A("v_lshrrev_b32 v16, 3, v1\nv_and_b32 v18, 7, v1\nv_lshrrev_b32 v18, 1, v18\nv_lshrrev_b32 v19, 4, v1")
    A("v_xor_b32 v18, v18, v19\nv_lshlrev_b32 v18, 1, v18\nv_or_b32 v18, v18, v17\nv_lshlrev_b32 v18, 4, v18")
    A("s_lshl_b32 s35, s24, 5\nv_add_u32 v16, s35, v16\nv_mul_u32_u24 v16, 896, v16\nv_add_u32 v16, v16, v18")
    for j in range(4): A(f"v_add_u32 v{VWO+j}, {j*(7168-1024)}, v16")
    A(f"v_mov_b32 v{VLDS[0]}, v{VL16}\nv_add_u32 v{VLDS[1]}, 0x10000, v{VL16}")
    A("v_lshrrev_b32 v16, 2, v14\nv_and_b32 v17, 3, v14")
    A("v_lshlrev_b32 v18, 3, v13\nv_add_u32 v18, v18, v16\nv_lshlrev_b32 v18, 9, v18\nv_lshlrev_b32 v19, 3, v17\nv_add_u32 v18, v18, v19")
    A("v_and_b32 v20, 1, v13\nv_lshlrev_b32 v20, 2, v20\nv_or_b32 v20, v20, v16")
    for c in range(8):
        A(f"v_xor_b32 v21, {c}, v20\nv_lshlrev_b32 v21, 5, v21\nv_add_u32 v{WB[0]+c}, v18, v21\nv_add_u32 v{WB[1]+c}, 0x10000, v{WB[0]+c}")
    A("v_lshlrev_b32 v18, 2, v13\nv_add_u32 v18, v18, v16")
    A("v_lshrrev_b32 v20, 1, v18\nv_and_b32 v20, 3, v20\nv_lshlrev_b32 v18, 7, v18\nv_add_u32 v18, v18, v19")
    for mb in range(4):
        A(f"v_xor_b32 v21, {mb}, v20\nv_lshlrev_b32 v21, 5, v21\nv_add_u32 v{OBASE[0]+mb}, v18, v21\nv_add_u32 v{OBASE[1]+mb}, 0x10000, v{OBASE[0]+mb}")
    A(f"v_add_u32 v{VV}, s32, v{VL16}\nv_add_u32 v{VK}, 0x10000, v{VV}\nv_add_u32 v{VV}, 0x4000, v{VV}")
    A(f"v_lshlrev_b32 v16, 2, v13\nv_sub_u32 v{VD0}, v14, v16\ns_lshl_b32 s35, s24, 5\nv_add_u32 v{VD0}, s35, v{VD0}")
    A(f"v_mov_b32 v{VNINF}, 0xff800000")
    A(f"s_lshl_b32 s33, s25, 21\ns_add_u32 s33, s33, {WS_KV-65536}")
    A("s_mov_b32 s34, s26")
    A("s_mov_b32 s40, 0x3db8aa3b\ns_mov_b32 s41, 0x3db8aa3b")
    A("s_mov_b32 s64, s40\ns_mov_b32 s65, s41")
    P=[]
    for f in range(7):
        ph=Phase(f"wq{f}"); add_wq(ph,(2*f)%8,2*f); add_wq(ph,(2*f+1)%8,2*f+1); P.append(ph)
    for f in range(3):
        ph=Phase(f"w1{f}"); add_w1(ph,(14+2*f)%8,2*f); add_w1(ph,(15+2*f)%8,2*f+1); P.append(ph)
    ph=Phase("w1s"); add_w1(ph,4,6); nW=len(ph.mf); add_S(ph,5,240,False); P.append(ph)
    for f in range(4): P[f].dma=dma_wq(2*(f+3),(2*(f+3))%8)+dma_wq(2*(f+3)+1,(2*(f+3)+1)%8)
    for f in range(3): P[4+f].dma=dma_w1(2*f,(14+2*f)%8)+dma_w1(2*f+1,(15+2*f)%8)
    P[7].dma=dma_w1(6,4)+dma_kv(5,None)
    P[8].dma=dma_kv(6,None); P[9].dma=dma_kv(0,1); P[10].dma=dma_kv(2,3)
    QV=[]
    for s in range(8):
        for qb in range(2):
            a=O(2*s,qb); b=O(2*s+1,qb)
            for r in (a,a+2,b,b+2): QV.append((f"v_pk_mul_f32 v[{r}:{r+1}], v[{r}:{r+1}], s[64:65]",1))
            QV+= [(f"v_cvt_pk_bf16_f32 v{a}, v{a}, v{a+1}",1),(f"v_cvt_pk_bf16_f32 v{a+1}, v{a+2}, v{a+3}",1),(f"v_cvt_pk_bf16_f32 v{a+2}, v{b}, v{b+1}",1),(f"v_cvt_pk_bf16_f32 v{a+3}, v{b+2}, v{b+3}",1)]
            QV+= [(f"v_accvgpr_write_b32 a{QF+8*s+4*qb+k}, v{a+k}",1) for k in range(4)]
    P[7].valu=QV[:64]; P[7].valu_lo=4; P[8].valu=QV[64:128]; P[9].valu=QV[128:]
    HV=[(f"v_sub_f32 v14, 1.0, v{VG[0]}",1,nW+2),(f"v_mov_b32 v15, v14",1),(f"v_sub_f32 v74, 1.0, v{VG[1]}",1),(f"v_mov_b32 v75, v74",1)]
    for u in range(4):
        for qb in range(2):
            sc="v[14:15]" if qb==0 else "v[74:75]"
            for half in range(2):
                fb=2*u+half; dsta=HF+8*u+4*qb+2*half
                if fb==7:
                    HV+=[(f"v_accvgpr_write_b32 a{dsta}, 0",1),(f"v_accvgpr_write_b32 a{dsta+1}, 0",1)]; continue
                a=FACC+8*fb+4*qb
                HV+=[(f"v_pk_mul_f32 v[{a}:{a+1}], v[{a}:{a+1}], {sc}",1),(f"v_pk_mul_f32 v[{a+2}:{a+3}], v[{a+2}:{a+3}], {sc}",1),
                     (f"v_cvt_pk_bf16_f32 v{a}, v{a}, v{a+1}",1),(f"v_cvt_pk_bf16_f32 v{a+1}, v{a+2}, v{a+3}",1),
                     (f"v_pk_max_i16 v{a}, v{a}, 0",1),(f"v_pk_max_i16 v{a+1}, v{a+1}, 0",1),
                     (f"v_accvgpr_write_b32 a{dsta}, v{a}",1),(f"v_accvgpr_write_b32 a{dsta+1}, v{a+1}",1)]
    P[10].valu=HV; P[10].valu_lo=nW+2
    def kvd(u,k=True,v=True):
        pr=(u+6)%4
        return dma_kv(2*pr if k else None, 2*pr+1 if v else None)
    a0=attn_phase(0,True,False,False,True,kvd(0),"a0s")
    an=[attn_phase(u,True,True,False,False,kvd(u),f"an{u}") for u in range(4)]
    a04=attn_phase(0,True,False,False,True,kvd(0,k=False),"a04")
    items=[(0,0),(0,1)]
    for sl in range(1,7):
        items+= [(sl,2),(sl,0),(sl,1)]
    assert len(items)==20
    def outd(k):
        pr=k%4
        return dma_out(*items[2*k],2*pr)+dma_out(*items[2*k+1],2*pr+1)
    am=[attn_phase(0,True,True,True,False,kvd(0,k=False),"am0"),
        attn_phase(1,True,True,True,False,dma_out(0,2,6)+dma_kv(None,7),"am1"),
        attn_phase(2,True,True,True,False,outd(0),"am2"),
        attn_phase(3,False,True,True,False,outd(1),"am3")]
    ACC=[16,48]
    fin=Phase("fin"); add_PV(fin,7,PB[1]); add_out(fin,6,2,ACC[0],True); fin.dma=outd(2)
    FV=[]
    class L(list):
        def __call__(s,t):
            for x in t.split("\n"): s.append((x,1))
    T=L()
    ln=LB[1]
    for qb in range(2):
        sc=72+2*qb
        T(f"v_add_f32 v{sc}, v{ln+2*qb}, v{ln+2*qb+1}")
        xmax(T,sc,13,"v_add_f32")
        T(f"v_rcp_f32 v{sc}, v{sc}\ns_nop 0\nv_mul_f32 v{sc}, v{sc}, v{VG[qb]}\nv_mov_b32 v{sc+1}, v{sc}")
    FV+=list(T)
    for s in range(8):
        for qb in range(2):
            a=O(2*s,qb); b=O(2*s+1,qb); sc=f"v[{72+2*qb}:{73+2*qb}]"
            for kk,r in enumerate((a,a+2,b,b+2)): FV.append((f"v_pk_mul_f32 v[{r}:{r+1}], v[{r}:{r+1}], {sc}",1,4*s+9))
            FV+= [(f"v_cvt_pk_bf16_f32 v{a}, v{a}, v{a+1}",1),(f"v_cvt_pk_bf16_f32 v{a+1}, v{a+2}, v{a+3}",1),(f"v_cvt_pk_bf16_f32 v{a+2}, v{b}, v{b+1}",1),(f"v_cvt_pk_bf16_f32 v{a+3}, v{b+2}, v{b+3}",1)]
    fin.valu=FV; fin.valu_hi=56
    OP=[]
    started={0}
    def epi(sl):
        acc=ACC[sl&1]; out=[f"s_add_u32 s35, s42, {sl*4096}"]
        for pp in range(2):
            for qb in range(2):
                a=acc+16*pp+4*qb; b=a+8
                out+= [f"v_cvt_pk_bf16_f32 v{a}, v{a}, v{a+1}",f"v_cvt_pk_bf16_f32 v{a+1}, v{a+2}, v{a+3}",f"v_cvt_pk_bf16_f32 v{a+2}, v{b}, v{b+1}",f"v_cvt_pk_bf16_f32 v{a+3}, v{b+2}, v{b+3}",
                       f"buffer_store_dwordx4 v[{a}:{a+3}], v{VL16}, s[12:15], s35 offen offset:{(pp*2+qb)*1024}"]
        return out
    epi_at={1:0,3:1,4:2,6:3,7:4,9:5}
    for k in range(10):
        ph=Phase(f"o{k}")
        for h in range(2):
            sl,kind=items[2*k+h]
            add_out(ph,2*(k%4)+h,kind,ACC[sl&1],sl not in started); started.add(sl)
        d=outd(k+3) if k+3<10 else []
        if k in epi_at: d=d+epi(epi_at[k])
        ph.dma=d; OP.append(ph)
    A("s_waitcnt vmcnt(16)\ns_barrier")
    fc=0
    for f in range(npre(P[0])):
        for t in P[0].frags[f]: A(t.format(**fr(f)))
    def nextfc(fc,ph): return (fc+len(ph.frags)+F-1)//F*F if False else fc+len(ph.frags)
    prevn=8
    seq=P+[None]
    si=1
    def st():
        nonlocal si
        x=stamp(si); si+=1; return x
    for k,ph in enumerate(P):
        last=(k==len(P)-1)
        fcn=fc+len(ph.frags)
        if last: fcn=(fcn+F-1)//F*F
        nv=nvm(ph.dma)
        nx=P[k+1] if not last else a0
        emit_phase(A,ph,fc,nx,fcn,nv+prevn,stampi=(st() if k in (6,) else None))
        prevn=nv; fc=fcn
    A("s_nop 7")
    A(f"s_cmp_eq_u32 s34, 0\ns_cselect_b32 s35, 0, 0x1000\nv_add_u32 v{VD}, s35, v{VD0}\ns_nop 1")
    for ins,c in mask_ops(240): A(ins)
    for qb in range(2):
        rowmax(A,240,qb,13,14)
        for r in range(4): A(f"v_sub_f32 v{NEGM+4*qb+r}, 0, v13")
        for kvb in range(2):
            for r in range(4): A(f"v_sub_f32 v{SB[0]+8*kvb+4*qb+r}, v{240+8*kvb+4*qb+r}, v13")
    for r in range(4): A(f"v_mov_b32 v{LB[1]+r}, 0")
    if k1.STAMPS: A(st()); A("s_waitcnt lgkmcnt(0)") if False else None
    fcA=fc
    assert fcA%F==0
    A("s_cmp_eq_u32 s34, 0\ns_cbranch_scc1 K2_n4")
    emit_phase(A,a0,fcA,an[1],fcA,nvm(a0.dma)+prevn)
    A("s_branch K2_an1\n.p2align 6\nK2_loop:")
    for u in range(4):
        if u==1: A("K2_an1:")
        emit_phase(A,an[u],fcA,an[(u+1)%4],fcA,16)
    A("s_sub_u32 s34, s34, 1\ns_cmp_lg_u32 s34, 0\ns_cbranch_scc1 K2_loop")
    emit_phase(A,am[0],fcA,am[1],fcA,nvm(am[0].dma)+8)
    A("K2_am1:")
    chain=am[1:]+[fin]+OP
    prevn=nvm(am[0].dma)
    for k,ph in enumerate(chain):
        last=(k==len(chain)-1)
        nv=nvm(ph.dma)
        fcn=fcA if k<3 else (fc+len(ph.frags))
        fcur=fcA if k<=3 else fc
        if k==3: fcn=fcA+len(ph.frags)
        emit_phase(A,ph,fcur,None if last else chain[k+1],fcn,nv+prevn,barrier=not last,stampi=(st() if ph.name in("am3","fin") else None))
        if ph.name=="am3":
            A(f"s_lshl_b32 s42, s25, 4\ns_add_u32 s42, s42, s26\ns_lshl_b32 s42, s42, 2\ns_add_u32 s42, s42, s24\ns_mul_i32 s42, s42, {7*4096}\ns_add_u32 s42, s42, {WS_PART}")
        prevn=nv; fc=fcn
    A("s_nop 7")
    for x in epi(6): A(x)
    if k1.STAMPS:
        A("s_waitcnt vmcnt(0)"); A(st())
        A(f"s_waitcnt lgkmcnt(0)\ns_cmp_lg_u32 s24, 0\ns_cbranch_scc1 K2_st")
        A(f"s_lshl_b32 s58, s2, 6\ns_add_u32 s58, s58, {WS_STAMP+16384}\nv_mov_b32 v2, s58\ns_mov_b64 exec, 1")
        for i in range(si): A(f"v_mov_b32 v3, s{STB+2*i}\nbuffer_store_dword v3, v2, s[12:15], 0 offen offset:{4*i}")
        A("s_mov_b64 exec, -1\nK2_st:")
    A("s_endpgm")
    A("K2_n4:")
    emit_phase(A,a04,fcA,am[1],fcA,nvm(a04.dma)+nvm(P[10].dma))
    A("s_branch K2_am1")
    for lbl,p,hs,back in RARE: rare(A,lbl,p,hs,back)
    A("K2_end:\ns_endpgm")

def k3(A,name="k3_kernel"):
    A(f".globl {name}\n.p2align 8\n.type {name},@function\n{name}:")
    A("s_cmp_ge_u32 s2, 448\ns_cbranch_scc1 K3_end")
    A("s_load_dwordx2 s[12:13], s[0:1], 96\ns_load_dwordx2 s[4:5], s[0:1], 80")
    srd(A,12,WS_SIZE); srd(A,4,2048*448*2)
    A("v_and_b32 v1, 63, v0\nv_lshrrev_b32 v2, 6, v0\ns_nop 0\nv_readfirstlane_b32 s16, v2")
    A("s_lshl_b32 s17, s2, 2\ns_add_u32 s17, s17, s16\ns_lshl_b32 s17, s17, 10")
    A(f"s_add_u32 s17, s17, {WS_PART}\nv_lshlrev_b32 v2, 4, v1")
    A("s_waitcnt lgkmcnt(0)")
    HS=16*4*7*4096
    for h in range(16):
        A(f"buffer_load_dwordx4 v[{8+4*h}:{11+4*h}], v2, s[12:15], s17 offen")
        if h<15: A(f"s_add_u32 s17, s17, {HS}")
    A("s_mul_i32 s18, s2, 9363\ns_lshr_b32 s18, s18, 16")
    A("s_mul_i32 s19, s18, 7\ns_sub_u32 s19, s2, s19")
    A("s_lshl_b32 s18, s18, 5\ns_and_b32 s20, s16, 1\ns_lshl_b32 s20, s20, 4\ns_add_u32 s18, s18, s20")
    A("s_lshl_b32 s19, s19, 6\ns_lshr_b32 s20, s16, 1\ns_lshl_b32 s20, s20, 5\ns_add_u32 s19, s19, s20\ns_lshl_b32 s19, s19, 1")
    A("v_and_b32 v3, 15, v1\nv_add_u32 v3, s18, v3\nv_mul_u32_u24 v3, 896, v3\nv_lshrrev_b32 v4, 4, v1\nv_lshlrev_b32 v4, 3, v4\nv_add_u32 v3, v3, v4\nv_add_u32 v3, s19, v3")
    for k in range(8): A(f"v_mov_b32 v{72+k}, 0")
    for h in range(16):
        A(f"s_waitcnt vmcnt({15-h})")
        for k in range(4):
            A(f"v_lshlrev_b32 v80, 16, v{8+4*h+k}\nv_and_b32 v81, 0xffff0000, v{8+4*h+k}\nv_pk_add_f32 v[{72+2*k}:{73+2*k}], v[{72+2*k}:{73+2*k}], v[80:81]")
    for k in range(4): A(f"v_cvt_pk_bf16_f32 v{84+k}, v{72+2*k}, v{73+2*k}")
    A("buffer_store_dwordx2 v[84:85], v3, s[4:7], 0 offen\nbuffer_store_dwordx2 v[86:87], v3, s[4:7], 0 offen offset:32")
    A("K3_end:\ns_endpgm")
```

```python
from asmlib import *
RING0=64
F=16
class Phase:
    def __init__(s,name=""):
        s.name=name; s.frags=[]; s.mf=[]; s.valu=[]; s.dma=[]; s.post=[]; s.pre=[]; s.bar_pre=[]; s.nload=0
        s.valu_lo=0; s.valu_hi=None; s.fixed=[]
    def frag(s, instrs): s.frags.append(instrs); return len(s.frags)-1
    def mfma(s, f, text): s.mf.append((f,text))
def fr(fc):
    b=RING0+4*(fc%F); return dict(d4=f"a[{b}:{b+3}]", d2a=f"a[{b}:{b+1}]", d2b=f"a[{b+2}:{b+3}]", A=f"a[{b}:{b+3}]")
def npre(ph):
    n=0;c=0
    for f in ph.frags:
        if n>=8 or c+len(f)>12: break
        n+=1;c+=len(f)
    return n
def emit_phase(A, ph, fc0, nxt, fcn, vm, bpos=None, barrier=True, lat=6, stampi=None, extra_bar=None):
    n=len(ph.mf); S=Sched()
    for f,t in ph.mf:
        S.mfma(t.format(**fr(fc0+f)) if f is not None else t)
    if bpos is None: bpos=max(0,n-16)
    first={}; last={}
    for i,(f,t) in enumerate(ph.mf):
        if f is None: continue
        first.setdefault(f,i); last[f]=i
    k0=npre(ph)
    for pos,ins,c in ph.fixed: S.place(pos,ins,c)
    issue={}
    order=[]
    nf=len(ph.frags)
    rem=list(range(k0,nf))
    hi=max(0,bpos-7)
    p=0
    rd_events=[]
    for f in range(k0):
        for _ in ph.frags[f]: rd_events.append((-1,("c",f)))
    for k,f in enumerate(rem):
        pf=f-F
        lo=last[pf]+0 if (pf>=0 and pf in last) else 0
        want=int(k*hi/max(1,len(rem)))
        want=min(want, max(0,first[f]-lat-2)) if f in first else want
        p=max(p,lo,want)
        for t in ph.frags[f]:
            p=S.place(p,t.format(**fr(fc0+f)),1)
            rd_events.append((p,("c",f)))
    lastread=p
    barpos=None
    if barrier:
        barpos=max(bpos, min(n-1,lastread+6))
        barpos=min(barpos,n-1)
        bl=[]
        if stampi is not None: bl.append(stampi)
        bl.append(f"s_waitcnt vmcnt({vm}) lgkmcnt(0)")
        bl.append("s_barrier")
        if extra_bar: bl+=extra_bar
        for x in bl: S.fill[barpos].append(x); S.cap[barpos]-=1
        if nxt is not None:
            kn=npre(nxt); p=barpos
            for f in range(kn):
                lo=0
                for g in range(nf):
                    if (fc0+g)%F==(fcn+f)%F and g in last: lo=max(lo,last[g])
                p=max(p,lo)
                for t in nxt.frags[f]:
                    p=S.place(p,t.format(**fr(fcn+f)),1)
    dh=(barpos if barpos is not None else n)-1
    pos=1
    for k,ins in enumerate(ph.dma):
        want=1+int(k*(dh-2)/max(1,len(ph.dma)))
        pos=S.place(max(pos,want),ins,1)
        if barpos is not None and pos>barpos and ins.startswith("buffer_load"):
            raise Exception(f"dma after barrier in {ph.name}")
    lo=ph.valu_lo; vh=ph.valu_hi if ph.valu_hi is not None else n-2
    pos=lo; tot=len(ph.valu)
    for k,it in enumerate(ph.valu):
        ins,c=it[0],it[1]
        want=lo+int(k*(vh-lo)/max(1,tot))
        if len(it)>2: want=max(want,it[2])
        pos=S.place(max(pos,want),ins,c)
    done=0
    seq=[]
    prog=[]
    for i in range(n):
        prog.append(("m",i))
        for x in S.fill[i]: prog.append(("f",i,x))
    issued=[("c",f,-100) for f in range(k0) for _ in ph.frags[f]]
    txt2f={}
    for f in range(k0,nf):
        for t in ph.frags[f]: txt2f[t.format(**fr(fc0+f))]=f
    known=0
    for e in prog:
        if e[0]=="m":
            i=e[1]; f=ph.mf[i][0]
            if f is None: continue
            idxs=[k for k,x in enumerate(issued) if x[0]=="c" and x[1]==f]
            assert len(idxs)==len(ph.frags[f]), (ph.name,f,i,len(idxs))
            need=max(idxs)+1
            if need>known:
                tgt=need
                for k in range(need,len(issued)):
                    if issued[k][2]<=i-lat: tgt=k+1
                    else: break
                N=len(issued)-tgt
                S.pre[i].append(f"s_waitcnt lgkmcnt({min(N,15)})")
                known=tgt if N<=15 else len(issued)-15
        else:
            x=e[2]
            if x.startswith("ds_read") or x.startswith("ds_"):
                f=txt2f.get(x)
                issued.append(("c" if f is not None else "n", f, e[1]))
            elif x.startswith("s_waitcnt") and "lgkmcnt(0)" in x: known=len(issued)
    S.emit(A)
    for x in ph.post: A(x)
```

```python
import sys
sys.path.insert(0,"gen"); sys.path.insert(0,"dev")
import k1,k2,gen
k1.STAMPS=False
parts=[("k1_kernel",256,163840,k1.k1),("k2_kernel",256,131072,k2.k2),("k3_kernel",448,0,k2.k3)]
gen.build(parts,"cdna_kernels/"+gen.NAME+".s")
```

```python
import sys
sys.path.insert(0,"gen"); sys.path.insert(0,"dev")
from asmlib import *
import k1
NAME="gated_mix__compressed_kv_cla__dense_activation_relu__prompt"
MACROS=""".macro M dk,d,ak,a,bk,b
v_mfma_f32_16x16x32_bf16 \\dk[\\d:\\d+3], \\ak[\\a:\\a+3], \\bk[\\b:\\b+3], \\dk[\\d:\\d+3]
.endm
.macro Z dk,d,ak,a,bk,b
v_mfma_f32_16x16x32_bf16 \\dk[\\d:\\d+3], \\ak[\\a:\\a+3], \\bk[\\b:\\b+3], 0
.endm
.macro T d,v,o
ds_read_b64_tr_b16 a[\\d:\\d+1], v\\v offset:\\o
.endm
.macro R d,v,o
ds_read_b128 a[\\d:\\d+3], v\\v offset:\\o
.endm
.macro C v,s,so,o
buffer_load_dwordx4 v\\v, s[\\s:\\s+3], \\so offen offset:\\o sc1 lds
.endm
.macro L v,s,so,o
buffer_load_dwordx4 v\\v, s[\\s:\\s+3], \\so offen offset:\\o lds
.endm"""
import re
_m=re.compile(r"^v_mfma_f32_16x16x32_bf16 ([va])\[(\d+):\d+\], ([va])\[(\d+):\d+\], ([va])\[(\d+):\d+\], (\S+)$")
_t=re.compile(r"^ds_read_b64_tr_b16 a\[(\d+):\d+\], v(\d+) offset:(\d+)$")
_r=re.compile(r"^ds_read_b128 a\[(\d+):\d+\], v(\d+) offset:(\d+)$")
_l=re.compile(r"^buffer_load_dwordx4 v(\d+), s\[(\d+):\d+\], (\w+) offen offset:(\d+) lds$")
_c=re.compile(r"^buffer_load_dwordx4 v(\d+), s\[(\d+):\d+\], (\w+) offen offset:(\d+) sc1 lds$")
def compress(L):
    out=[]; done=False
    for l in L:
        if l==".text" or l.endswith("\n.text"): pass
        m=_m.match(l)
        if m:
            dk,d,ak,a,bk,b,c=m.groups()
            if c==f"{dk}[{d}:{int(d)+3}]": out.append(f"M {dk},{d},{ak},{a},{bk},{b}"); continue
            if c=="0": out.append(f"Z {dk},{d},{ak},{a},{bk},{b}"); continue
        m=_t.match(l)
        if m: out.append("T %s,%s,%s"%m.groups()); continue
        m=_r.match(l)
        if m: out.append("R %s,%s,%s"%m.groups()); continue
        m=_l.match(l)
        if m: out.append("L %s,%s,%s,%s"%m.groups()); continue
        m=_c.match(l)
        if m: out.append("C %s,%s,%s,%s"%m.groups()); continue
        out.append(l)
        if l==".text" and not done:
            out+=MACROS.split("\n"); done=True
    return out
def build(parts, out):
    A=Asm()
    hdr=open(f"cdna_kernels/{NAME}.s.ref").read().split("\n")
    for l in hdr:
        if l.startswith("; Override") or l.startswith("; grid=") or l.startswith("; @launch") : continue
        if l.startswith(";"): A(l)
        else: break
    for (kn,grid,lds,fn) in parts: A(f"; @launch kernel={kn} grid=({grid},1,1) block=(256,1,1) lds={lds}")
    A('.amdgcn_target "amdgcn-amd-amdhsa--gfx950"\n.text')
    for (kn,grid,lds,fn) in parts: fn(A,kn)
    A('.section .rodata,"a"')
    for (kn,grid,lds,fn) in parts: A(".p2align 6"); A(kernel_footer(kn, *((88,88) if kn=="k3_kernel" else (512,256))))
    L2=[]
    for l in A.L:
        if L2 and l.startswith("buffer_load") and l.endswith(" lds") and (L2[-1].startswith("s_add_u32 m0") or L2[-1].startswith("s_mov_b32 m0")): L2.append("s_nop 0")
        L2.append(l)
    A.L=L2
    lint(A.L)
    A.L=compress(A.L)
    open(out,"w").write(A.text())
    print(out, len(A.text()), "bytes")
if __name__=="__main__":
    import build as B, k2
    parts=[("k1_kernel",256,163840,k1.k1),("k2_kernel",256,131072,k2.k2),("k3_kernel",448,0,k2.k3)]
    build(parts,"t_all.s")
    print(B.build("t_all.s","k1_kernel",13))
```

```python
from asmlib import *
import os
WSB=int(os.environ.get('WSB','0'),0)
WS_KV=0x100000+WSB
WS_GATE=0x2200000+WSB
WS_PART=0x2300000+WSB
WS_SIZE=0x10000000
def srd(A,d,nrec):
    A(f"s_mov_b32 s{d+2}, {nrec}\ns_mov_b32 s{d+3}, 0x20000")
WS_STAMP=0x8000000
STAMPS=True
def stamp(A,i):
    if STAMPS: A(f"s_memrealtime s[{60+2*i}:{61+2*i}]")
def stamp_store(A,n,kidx,lbl):
    if not STAMPS: return
    A(f"s_waitcnt lgkmcnt(0)\ns_cmp_lg_u32 s24, 0\ns_cbranch_scc1 {lbl}")
    A(f"s_lshl_b32 s58, s2, 6\ns_add_u32 s58, s58, {WS_STAMP+kidx*16384}\nv_mov_b32 v2, s58")
    A("s_mov_b64 exec, 1")
    for i in range(n):
        A(f"v_mov_b32 v3, s{60+2*i}\nbuffer_store_dword v3, v2, s[12:15], 0 offen offset:{4*i}")
    A(f"s_mov_b64 exec, -1\n{lbl}:")
OPT={}
def k1(A, name="k1_kernel"):
    SC=" sc1" if OPT.get("sc1") else ""
    A(f".globl {name}\n.p2align 8\n.type {name},@function\n{name}:")
    A(f"s_cmp_ge_u32 s2, 256\ns_cbranch_scc1 K1_end")
    stamp(A,0)
    A("s_load_dwordx2 s[4:5], s[0:1], 8")
    A("s_load_dwordx2 s[32:33], s[0:1], 24")
    A("s_load_dwordx2 s[34:35], s[0:1], 32")
    A("s_load_dwordx2 s[12:13], s[0:1], 96")
    A("s_load_dwordx2 s[16:17], s[0:1], 0")
    A("s_load_dwordx2 s[20:21], s[0:1], 72")
    A("v_and_b32 v1, 63, v0\nv_lshrrev_b32 v2, 6, v0")
    A("s_and_b32 s36, s2, 7\ns_lshr_b32 s37, s2, 3")
    A("v_readfirstlane_b32 s24, v2")
    A("s_lshr_b32 s38, s37, 3\ns_and_b32 s27, s37, 7")
    A("s_and_b32 s39, s38, 1\ns_lshl_b32 s25, s36, 1\ns_add_u32 s25, s25, s39")
    A("s_lshr_b32 s26, s38, 1")
    srd(A,4,4194304); srd(A,12,WS_SIZE); srd(A,16,1835008); srd(A,20,896)
    A("s_waitcnt lgkmcnt(0)")
    A("s_cmp_eq_u32 s26, 0\ns_cselect_b32 s8, s32, s34\ns_cselect_b32 s9, s33, s35")
    srd(A,8,8388608)
    vC=[4,5,6,7]; vW=[8,9,10,11]; wb=list(range(12,20)); cb=[[20,21],[22,23]]
    vL16=24
    A("v_lshlrev_b32 v24, 4, v1")
    A("s_lshl_b32 s40, s27, 8\ns_lshl_b32 s41, s24, 6\ns_add_u32 s40, s40, s41\ns_lshl_b32 s40, s40, 11")
    A("v_lshrrev_b32 v25, 3, v1\nv_lshlrev_b32 v25, 11, v25\nv_add_u32 v25, s40, v25")
    A("v_and_b32 v26, 7, v1\nv_lshrrev_b32 v27, 4, v1\nv_xor_b32 v26, v26, v27")
    for j in range(4):
        if j&1: A("v_xor_b32 v27, 4, v26")
        else: A("v_mov_b32 v27, v26")
        A(f"v_lshlrev_b32 v27, 4, v27\nv_add_u32 v27, v27, v25\nv_add_u32 v{vC[j]}, {j*(16384-1024)}, v27")
    A("v_lshrrev_b32 v25, 5, v1")
    A("v_and_b32 v26, 31, v1\nv_lshrrev_b32 v26, 1, v26")
    A("v_and_b32 v28, 1, v1")
    A("s_and_b32 s41, s24, 1\ns_lshl_b32 s41, s41, 2")
    A("s_lshl_b32 s42, s24, 16\ns_lshl_b32 s43, s25, 9\ns_add_u32 s42, s42, s43")
    for j in range(4):
        A(f"v_add_u32 v27, {2*j}, v25\nv_and_b32 v29, 3, v27\nv_or_b32 v29, s41, v29")
        A(f"v_xor_b32 v29, v29, v26\nv_lshlrev_b32 v29, 1, v29\nv_or_b32 v29, v29, v28\nv_lshlrev_b32 v29, 4, v29")
        A(f"v_lshlrev_b32 v27, 13, v27\nv_add_u32 v27, v27, v29\nv_add_u32 v27, s42, v27")
        if j: A(f"v_subrev_u32 v{vW[j]}, {j*1024}, v27")
        else: A(f"v_mov_b32 v{vW[j]}, v27")
    A("s_lshl_b32 s28, s24, 13\ns_lshl_b32 s29, s24, 12\ns_add_u32 s29, s29, 98304")
    def dma_c(q,half):
        slot=q%3
        out=[f"s_add_u32 m0, s28, {slot*32768+half*4096}", f"s_mov_b32 s30, {q*128+half*65536}"]
        out+=[f"buffer_load_dwordx4 v{vC[j]}, s[4:7], s30 offen offset:{j*1024} lds" for j in range(4)]
        return out
    def dma_w(p):
        slot=p%4
        out=[f"s_add_u32 m0, s29, {slot*16384}", f"s_mov_b32 s31, {p*32*8192}"]
        out+=[f"buffer_load_dwordx4 v{vW[j]}, s[8:11], s31 offen offset:{j*1024} lds" for j in range(4)]
        return out
    A("s_lshl_b32 s44, s2, 3\ns_lshl_b32 s42, s24, 1\ns_add_u32 s44, s44, s42")
    A("s_mul_i32 s42, s44, 896")
    A("v_add_u32 v25, s42, v24\nv_cmp_gt_u32 vcc, 56, v1\nv_mov_b32 v26, 0x7ff00000\ns_nop 0")
    A("v_cndmask_b32 v25, v26, v25, vcc")
    A("buffer_load_dwordx4 v[32:35], v25, s[16:19], 0 offen")
    A("buffer_load_dwordx4 v[36:39], v25, s[16:19], 0 offen offset:896")
    A("buffer_load_dwordx4 v[40:43], v24, s[20:23], 0 offen")
    for x in dma_c(0,0)+dma_c(0,1)+dma_w(0)+dma_w(1)+dma_c(1,0)+dma_c(1,1)+dma_w(2)+dma_w(3)+dma_c(2,0): A(x)
    A("v_lshrrev_b32 v25, 4, v1\nv_and_b32 v26, 15, v1")
    A("v_lshrrev_b32 v27, 2, v26\nv_and_b32 v28, 3, v26")
    A("v_lshlrev_b32 v29, 3, v25\nv_add_u32 v29, v29, v27\nv_lshlrev_b32 v29, 9, v29")
    A("v_lshlrev_b32 v28, 3, v28\nv_add_u32 v29, v29, v28")
    A("v_and_b32 v30, 1, v25\nv_lshlrev_b32 v30, 2, v30\nv_or_b32 v30, v30, v27")
    A("s_lshr_b32 s41, s24, 1\ns_lshl_b32 s41, s41, 8\ns_add_u32 s41, s41, 98304")
    A("v_add_u32 v29, s41, v29")
    for c in range(8):
        A(f"v_xor_b32 v31, {c}, v30\nv_lshlrev_b32 v31, 5, v31\nv_add_u32 v{wb[c]}, v29, v31")
    A("v_lshrrev_b32 v27, 1, v26\nv_xor_b32 v27, v27, v25")
    A("s_and_b32 s41, s24, 1\ns_lshl_b32 s41, s41, 14")
    A("v_lshlrev_b32 v28, 7, v26\nv_add_u32 v28, s41, v28")
    for ks in range(2):
        A(f"v_xor_b32 v29, {4*ks}, v27\nv_lshlrev_b32 v29, 4, v29\nv_add_u32 v{cb[ks][0]}, v29, v28\nv_add_u32 v{cb[ks][1]}, 0x10000, v{cb[ks][0]}")
    A("s_waitcnt vmcnt(36)")
    for k in range(4):
        A(f"v_lshlrev_b32 v{44+2*k}, 16, v{40+k}\nv_and_b32 v{45+2*k}, 0xffff0000, v{40+k}")
    A("v_mov_b32 v60, 0\nv_mov_b32 v61, 0")
    for r in range(2):
        for k in range(4):
            A(f"v_lshlrev_b32 v52, 16, v{32+4*r+k}\nv_and_b32 v53, 0xffff0000, v{32+4*r+k}")
            A(f"v_fmac_f32 v{60+r}, v52, v{44+2*k}\nv_fmac_f32 v{60+r}, v53, v{45+2*k}")
    A("v_lshlrev_b32 v54, 2, v1")
    for m in (1,2,4,8,16,32):
        A(f"v_xor_b32 v55, {m*4}, v54\nds_bpermute_b32 v56, v55, v60\nds_bpermute_b32 v57, v55, v61\ns_waitcnt lgkmcnt(0)")
        A("v_add_f32 v60, v60, v56\nv_add_f32 v61, v61, v57")
    A("v_mul_f32 v60, 0xbfb8aa3b, v60\nv_mul_f32 v61, 0xbfb8aa3b, v61\nv_exp_f32 v60, v60\nv_exp_f32 v61, v61\ns_nop 0")
    A("v_add_f32 v60, 1.0, v60\nv_add_f32 v61, 1.0, v61\nv_rcp_f32 v60, v60\nv_rcp_f32 v61, v61")
    A(f"s_lshl_b32 s41, s44, 2\ns_add_u32 s41, s41, {WS_GATE}\nv_mov_b32 v62, s41")
    A("s_mov_b64 exec, 1\nbuffer_store_dwordx2 v[60:61], v62, s[12:15], 0 offen\ns_mov_b64 exec, -1")
    A("s_waitcnt vmcnt(20)\ns_barrier")
    def acc(i,j):
        n=i*8+j
        return (f"v[{32+4*n}:{35+4*n}]", 32+4*n, "v") if n<56 else (f"a[{128+4*(n-56)}:{131+4*(n-56)}]",128+4*(n-56),"a")
    def reads(p, typ):
        st=64*(p&1)
        Wd = st if typ==0 else st+32
        Cd = st+32 if typ==0 else st
        q=p>>1; ks=p&1; slot=q%3
        out=[]
        for f in range(8):
            base=cb[ks][1 if slot==2 else 0]; off=(32768 if slot==1 else 0)+f*2048
            out.append(f"ds_read_b128 a[{Cd+4*f}:{Cd+4*f+3}], v{base} offset:{off}")
            o=(p%4)*16384
            out.append(f"ds_read_b64_tr_b16 a[{Wd+4*f}:{Wd+4*f+1}], v{wb[f]} offset:{o}")
            out.append(f"ds_read_b64_tr_b16 a[{Wd+4*f+2}:{Wd+4*f+3}], v{wb[f]} offset:{o+2048}")
        return out
    stamp(A,1)
    if STAMPS: A("s_memtime s[82:83]")
    A("s_cmp_lg_u32 s26, 0\ns_cbranch_scc1 K1_V")
    for typ in range(2):
        if typ==1: A("K1_V:")
        for x in reads(0,typ): A(x)
        A("s_waitcnt lgkmcnt(0)")
        for p in range(32):
            st=64*(p&1)
            S=Sched()
            for i in range(8):
                for j in range(8):
                    d,_,_=acc(i,j)
                    c = d if p>0 else "0"
                    S.mfma(f"v_mfma_f32_16x16x32_bf16 {d}, a[{st+4*i}:{st+4*i+3}], a[{st+32+4*j}:{st+32+4*j+3}], {c}")
            D=[]
            if p+4<32: D+=dma_w(p+4)
            if p%2==0:
                q=p//2+2
                if q<16: D+=dma_c(q,1)
            else:
                q=(p-1)//2+3
                if q<16: D+=dma_c(q,0)
            if OPT.get("nodma"): D=[]
            if OPT.get("samedma"): D=[x if not x.startswith("s_mov_b32 s3") else x.split(",")[0]+", 0" for x in D]
            if p+1<32 and not OPT.get("noread"):
                rd=reads(p+1,typ)
                if OPT.get("notr"): rd=[x.replace("ds_read_b64_tr_b16","ds_read_b64") for x in rd]
                S.spread([(x,1) for x in rd],0,46)
            S.spread([(x,1) for x in D],2,60)
            if p%4==0 and p>0: stamp(A,3+p//4)
            S.emit(A)
            if p+1<32:
                def nl(pp):
                    if pp<0: return None
                    n=0
                    if pp+4<32: n+=4
                    q=pp//2+2 if pp%2==0 else (pp-1)//2+3
                    if q<16: n+=4
                    return n
                n=nl(p)+(nl(p-1) if p>0 else 8)
                A(f"s_waitcnt vmcnt({n}) lgkmcnt(0)\ns_barrier")
        stamp(A,2)
        if STAMPS: A("s_memtime s[86:87]\ns_waitcnt lgkmcnt(0)\ns_sub_u32 s82, s86, s82\ns_mov_b32 s84, 0\ns_mov_b32 s86, 0\ns_mov_b32 s88, 0")
        A("s_nop 7")
        A(f"s_lshl_b32 s40, s25, 21\ns_lshl_b32 s41, s27, 18\ns_add_u32 s40, s40, s41\ns_add_u32 s40, s40, {WS_KV}")
        A("s_and_b32 s41, s24, 1\ns_lshl_b32 s41, s41, 17\ns_add_u32 s40, s40, s41")
        A("s_lshr_b32 s41, s24, 1")
        if typ==0: A("s_lshl_b32 s41, s41, 12\ns_add_u32 s40, s40, s41")
        else: A("s_lshl_b32 s41, s41, 13\ns_add_u32 s40, s40, s41\ns_add_u32 s40, s40, 16384")
        def pack(t,j):
            d,r0,_=acc(2*t,j); e,r1,c1=acc(2*t+1,j)
            o=[]
            if c1=="a":
                for k in range(4): o.append(f"v_accvgpr_read_b32 v{26+k}, a{r1+k}")
                r1=26
            o.append(f"v_cvt_pk_bf16_f32 v{r0}, v{r0}, v{r0+1}")
            o.append(f"v_cvt_pk_bf16_f32 v{r0+1}, v{r0+2}, v{r0+3}")
            o.append(f"v_cvt_pk_bf16_f32 v{r0+2}, v{r1}, v{r1+1}")
            o.append(f"v_cvt_pk_bf16_f32 v{r0+3}, v{r1+2}, v{r1+3}")
            return o,r0
        if typ==0:
            for j in range(8):
                A(f"s_add_u32 s41, s40, {(j>>1)*32768+(j&1)*8192}")
                for t in range(4):
                    o,r0=pack(t,j)
                    for x in o: A(x)
                    A(f"buffer_store_dwordx4 v[{r0}:{r0+3}], v{vL16}, s[12:15], s41 offen offset:{t*1024}{SC}")
        else:
            for t in range(4):
                for j in range(8):
                    if j%4==0: A(f"s_add_u32 s41, s40, {t*32768+(j>>2)*4096}")
                    o,r0=pack(t,j)
                    for x in o: A(x)
                    A(f"buffer_store_dwordx4 v[{r0}:{r0+3}], v{vL16}, s[12:15], s41 offen offset:{(j&3)*1024}{SC}")
        if STAMPS:
            A("s_waitcnt vmcnt(0)"); stamp(A,3); stamp_store(A,15,0,f"K1_st{typ}")
        A("s_endpgm")
    A("K1_end:\ns_endpgm")
```

```python
from asmlib import *
from stream import *
import k1
from k1 import srd, WS_GATE, WS_PART, WS_SIZE, WS_STAMP
OPT={}
SQ,S1,SO,S2,SX=4,8,16,20,28
STB=66
def stamp(i): return f"s_memrealtime s[{STB+2*i}:{STB+2*i+1}]" if k1.STAMPS else None
SB=[16,32]; PB=[48,56]; ET=64; NEGM=72; LB=[80,84]; OB=128
WB=[88,96]
OBASE=[116,120]
VWQ=104; VW1=108; VWO=112
VLDS=[3,4]; VK=5; VV=6; VL16=7; VG=[8,9]; VD0=10; VD=11; VNINF=12; VT=13
XF=128; HF=128; QF=0
FACC=16
def O(db,qb): return OB+8*db+4*qb
def slotaddr(slot): return (slot>>2), (slot&3)*16384
def dma_lines(vregs, srdb, slot, soff, comp=True):
    out=[f"s_add_u32 m0, s32, {slot*16384}"]
    if isinstance(soff,int):
        out.append(f"s_mov_b32 s35, {soff}"); so="s35"
    else:
        so=soff
        out.append("s_nop 0")
    for j in range(4):
        v=vregs[j] if isinstance(vregs,list) else vregs
        out.append(f"buffer_load_dwordx4 v{v}, s[{srdb}:{srdb+3}], {so} offen offset:{j*1024} lds")
    return out
def dma_wq(it,slot,regs=None): return dma_lines(regs or [VWQ+j for j in range(4)],SQ,slot,it*32*8192)
def dma_w1(it,slot): return dma_lines([VW1+j for j in range(4)],S1,slot,it*64*3584)
def dma_out(sl,kind,slot):
    if kind<2: pre=[f"s_add_u32 s35, s38, {kind*128*896+sl*128}"]; b=SO
    else: pre=[f"s_add_u32 s35, s39, {sl*128}"]; b=S2
    out=[f"s_add_u32 m0, s32, {slot*16384}"]+pre
    for j in range(4): out.append(f"buffer_load_dwordx4 v{VWO+j}, s[{b}:{b+3}], s35 offen offset:{j*1024} lds")
    return out
KVSC=""
def dma_kv(kslot,vslot,adv=True,so="s33"):
    out=[]
    if kslot is not None:
        out.append(f"s_add_u32 m0, s32, {kslot*16384}"); out.append("s_nop 0" if False else None)
        out+= [f"buffer_load_dwordx4 v{VK}, s[12:15], {so} offen offset:{j*1024}{KVSC} lds" for j in range(4)]
    if vslot is not None:
        out.append(f"s_add_u32 m0, s32, {vslot*16384}")
        out+= [f"buffer_load_dwordx4 v{VV}, s[12:15], {so} offen offset:{j*1024}{KVSC} lds" for j in range(4)]
    if adv: out.append(f"s_add_u32 {so}, {so}, 0x8000")
    return [x for x in out if x]
def nvm(lines): return sum(1 for x in lines if (x[0] if isinstance(x,tuple) else x).startswith("buffer_"))
def tr_frag_w(slot,c,extra):
    hi,off=slotaddr(slot); b=WB[hi]+c
    return [f"ds_read_b64_tr_b16 {{d2a}}, v{b} offset:{off+extra}", f"ds_read_b64_tr_b16 {{d2b}}, v{b} offset:{off+extra+2048}"]
def tr_frag_o(slot,mb,ks):
    hi,off=slotaddr(slot); b=OBASE[hi]+mb
    return [f"ds_read_b64_tr_b16 {{d2a}}, v{b} offset:{off+ks*4096}", f"ds_read_b64_tr_b16 {{d2b}}, v{b} offset:{off+ks*4096+2048}"]
def lin_frag(slot,f):
    hi,off=slotaddr(slot)
    return [f"ds_read_b128 {{d4}}, v{VLDS[hi]} offset:{off+f*1024}"]
MF="v_mfma_f32_16x16x32_bf16"
def add_wq(ph,slot,ks):
    for db in range(16):
        f=ph.frag(tr_frag_w(slot,db&7,(db>>3)*256))
        for qb in range(2):
            d=vr(O(db,qb),4); x=ar(XF+8*ks+4*qb,4)
            ph.mfma(f,f"{MF} {d}, {{A}}, {x}, {d if ks else 0}")
def add_w1(ph,slot,it):
    for k2 in range(2):
        ks=2*it+k2
        for fb in range(7):
            f=ph.frag(tr_frag_w(slot,fb,k2*256))
            for qb in range(2):
                d=vr(FACC+8*fb+4*qb,4); x=ar(XF+8*ks+4*qb,4)
                ph.mfma(f,f"{MF} {d}, {{A}}, {x}, {d if ks else 0}")
def add_S(ph,slot,dst,cinit):
    for kvb in range(2):
        for s in range(8):
            f=ph.frag(lin_frag(slot,kvb*8+s))
            for qb in range(2):
                d=vr(dst+8*kvb+4*qb,4)
                c=d if s else (vr(NEGM+4*qb,4) if cinit else "0")
                ph.mfma(f,f"{MF} {d}, {{A}}, {ar(QF+8*s+4*qb,4)}, {c}")
def add_PV(ph,slot,pb):
    for db in range(16):
        f=ph.frag(lin_frag(slot,db))
        for qb in range(2):
            d=vr(O(db,qb),4)
            ph.mfma(f,f"{MF} {d}, {{A}}, {vr(pb+4*qb,4)}, {d}")
def add_out(ph,slot,kind,acc,first):
    for ks in range(4):
        for mb in range(4):
            f=ph.frag(tr_frag_o(slot,mb,ks))
            for qb in range(2):
                d=vr(acc+8*mb+4*qb,4)
                if kind<2:
                    s=4*kind+ks; B=vr(OB+16*s+4*qb,4)
                else: B=ar(HF+8*ks+4*qb,4)
                c=d if not (first and ks==0) else "0"
                ph.mfma(f,f"{MF} {d}, {{A}}, {B}, {c}")
def mask_ops(sb,qbs=(0,1)):
    out=[];
    masks={}
    k=0
    for dlt in (-1,0,1):
        for r in range(4):
            masks[(dlt,r)]=40+2*k; k+=1
    for dlt in (-1,0,1):
        for r in range(4):
            m=masks[(dlt,r)]
            out.append((f"v_cmp_le_i32_e64 s[{m}:{m+1}], {r+16*dlt}, v{VD}",1))
    for qb in qbs:
        for kvb in range(2):
            for r in range(4):
                m=masks[(kvb-qb,r)]; v=sb+8*kvb+4*qb+r
                out.append((f"v_cndmask_b32_e64 v{v}, v{VNINF}, v{v}, s[{m}:{m+1}]",1))
    return out
def softmax_ops(p):
    sb=SB[p]; pb=PB[p]; ln=LB[p]; lo=LB[1-p]
    out=[]
    for qb in range(2):
        for e in range(8):
            src=sb+(e//4)*8+4*qb+(e%4)
            out.append((f"v_exp_f32 v{ET+e}, v{src}",2))
            if e>=2 and e%2==0:
                k=e-2
                out+=pairops(k,qb,ln,lo,pb)
        out.append(("s_nop 0",1))
        out+=pairops(6,qb,ln,lo,pb)
    return out
def pairops(k,qb,ln,lo,pb):
    a=vr(ln+2*qb,2); src=vr(lo+2*qb,2) if k==0 else a
    if OPT.get("nopk"):
        s0=(lo if k==0 else ln)+2*qb
        return [(f"v_add_f32 v{ln+2*qb}, v{s0}, v{ET+k}",1),(f"v_add_f32 v{ln+2*qb+1}, v{s0+1}, v{ET+k+1}",1),(f"v_cvt_pk_bf16_f32 v{pb+4*qb+k//2}, v{ET+k}, v{ET+k+1}",1)]
    return [(f"v_pk_add_f32 {a}, {src}, {vr(ET+k,2)}",1),(f"v_cvt_pk_bf16_f32 v{pb+4*qb+k//2}, v{ET+k}, v{ET+k+1}",1)]
def check_ops(p):
    ln=LB[p]
    if OPT.get("nopk"):
        return [(f"v_max3_f32 v14, v{ln}, v{ln+1}, v{ln+2}",1),(f"v_max_f32 v14, v14, v{ln+3}",1),("v_cmp_lt_f32 vcc, s37, v14",1)]
    return [(f"v_pk_add_f32 v[14:15], {vr(ln,2)}, {vr(ln+2,2)}",1),("v_add_f32 v14, v14, v15",1),("v_cmp_lt_f32 vcc, s37, v14",1)]
def xmax(A,v,t,op="v_max_f32"):
    A(f"v_mov_b32 v{t}, v{v}\ns_nop 1\nv_permlane32_swap_b32 v{v}, v{t}\ns_nop 1\n{op} v{v}, v{v}, v{t}")
    A(f"v_mov_b32 v{t}, v{v}\ns_nop 1\nv_permlane16_swap_b32 v{v}, v{t}\ns_nop 1\n{op} v{v}, v{v}, v{t}")
def rowmax(A,sb,qb,dst,t):
    s=[sb+(e//4)*8+4*qb+(e%4) for e in range(8)]
    A(f"v_max3_f32 v{dst}, v{s[0]}, v{s[1]}, v{s[2]}\nv_max3_f32 v{t}, v{s[3]}, v{s[4]}, v{s[5]}")
    A(f"v_max3_f32 v{dst}, v{dst}, v{s[6]}, v{s[7]}\nv_max_f32 v{dst}, v{dst}, v{t}")
    xmax(A,dst,t)
def rare(A,lbl,p,hasSnext,back):
    sb=SB[p]; sn=SB[1-p]; pb=PB[p]; ln=LB[p]; lo=LB[1-p]
    A(f"{lbl}:\ns_nop 7\ns_nop 7")
    for qb in range(2):
        rowmax(A,sb,qb,13,14)
        A(f"v_max_f32 v13, 0, v13")
        A(f"v_sub_f32 v14, 0, v13\nv_exp_f32 v15, v14\ns_nop 0")
        for r in range(4): A(f"v_add_f32 v{NEGM+4*qb+r}, v{NEGM+4*qb+r}, v14")
        for kvb in range(2):
            for r in range(4):
                A(f"v_add_f32 v{sb+8*kvb+4*qb+r}, v{sb+8*kvb+4*qb+r}, v14")
                if hasSnext: A(f"v_add_f32 v{sn+8*kvb+4*qb+r}, v{sn+8*kvb+4*qb+r}, v14")
        for db in range(16):
            for r in range(4): A(f"v_mul_f32 v{O(db,qb)+r}, v{O(db,qb)+r}, v15")
        A(f"v_mul_f32 v{lo+2*qb}, v{lo+2*qb}, v15\nv_mul_f32 v{lo+2*qb+1}, v{lo+2*qb+1}, v15")
    for ins,c in softmax_ops(p): A(ins)
    A(f"s_nop 1\ns_branch {back}")
RARE=[]
def attn_phase(u,hasS,hasPV,masked,zinit,dma,name):
    p=u&1; pair=(u+3)%4
    ph=Phase(name)
    if hasS: add_S(ph,2*pair,SB[1-p],True)
    if hasPV: add_PV(ph,2*pair+1,PB[1-p])
    V=[]
    if masked:
        V.append((f"v_subrev_u32 v{VD}, {32*u}, v{VD0}",1))
        V+=mask_ops(SB[p])
    V+=softmax_ops(p)
    V+=check_ops(p)
    ph.valu=V
    if zinit:
        for r in range(OB,OB+128,2): ph.valu.append((f"v_pk_mul_f32 v[{r}:{r+1}], 0, 0" if False else f"v_mov_b64 v[{r}:{r+1}], 0",1))
    ph.dma=dma
    lbl=f"RARE_{name}"; back=f"BACK_{name}"
    ph.post=["s_nop 0",f"s_cbranch_vccnz {lbl}",f"{back}:"]
    RARE.append((lbl,p,hasS,back))
    return ph

def k2(A,name="k2_kernel"):
    RARE.clear()
    from k1 import WS_KV
    A(f".globl {name}\n.p2align 8\n.type {name},@function\n{name}:")
    A("s_cmp_ge_u32 s2, 256\ns_cbranch_scc1 K2_end")
    if k1.STAMPS: A(stamp(0))
    for d,o in ((4,16),(8,56),(12,96),(16,40),(20,64),(28,0)): A(f"s_load_dwordx2 s[{d}:{d+1}], s[0:1], {o}")
    A("v_and_b32 v1, 63, v0\nv_lshrrev_b32 v2, 6, v0")
    A("s_and_b32 s36, s2, 7\ns_lshr_b32 s35, s2, 3")
    A("v_readfirstlane_b32 s24, v2")
    A("s_and_b32 s25, s35, 1\ns_lshl_b32 s36, s36, 1\ns_add_u32 s25, s25, s36")
    A("s_lshr_b32 s26, s35, 1")
    if OPT.get("rev"): A("s_sub_u32 s26, 15, s26")
    A("s_lshl_b32 s27, s26, 7")
    srd(A,4,448*8192); srd(A,8,448*3584); srd(A,12,WS_SIZE); srd(A,16,4096*896); srd(A,20,1792*896); srd(A,28,2048*896)
    A("s_lshl_b32 s32, s24, 12")
    A("s_mov_b32 s37, 0x53800000")
    A("s_mul_i32 s38, s25, %d\ns_mul_i32 s39, s25, %d"%(256*896,112*896))
    A("s_waitcnt lgkmcnt(0)")
    A(f"v_lshlrev_b32 v{VL16}, 4, v1")
    A("v_lshrrev_b32 v13, 4, v1\nv_and_b32 v14, 15, v1")
    A("s_lshl_b32 s35, s24, 5\ns_add_u32 s35, s35, s27")
    A("v_add_u32 v15, s35, v14\nv_mul_u32_u24 v2, 896, v15\nv_lshlrev_b32 v16, 4, v13\nv_add_u32 v2, v2, v16")
    A("s_mov_b32 s36, 14336")
    for ks in range(14):
        for qb in range(2):
            A(f"buffer_load_dwordx4 {ar(XF+8*ks+4*qb,4)}, v2, s[28:31], {'s36' if qb else '0'} offen offset:{ks*64}")
    A(f"v_lshlrev_b32 v15, 2, v15\nv_add_u32 v15, {WS_GATE}, v15")
    A(f"buffer_load_dword v{VG[0]}, v15, s[12:15], 0 offen\nbuffer_load_dword v{VG[1]}, v15, s[12:15], 0 offen offset:64")
    A("v_lshrrev_b32 v16, 5, v1\nv_and_b32 v17, 1, v1")
    A("v_and_b32 v18, 31, v1\nv_lshrrev_b32 v18, 1, v18")
    A("v_and_b32 v19, 7, v18")
    A("v_lshrrev_b32 v20, 4, v1\nv_and_b32 v20, 1, v20")
    A("s_and_b32 s35, s24, 1\ns_lshl_b32 s35, s35, 2")
    A("s_lshl_b32 s36, s24, 3")
    A("s_lshl_b32 s40, s25, 9\ns_mul_i32 s41, s25, 224")
    for j in range(4):
        A(f"v_add_u32 v21, {2*j}, v16\nv_and_b32 v22, 3, v21\nv_or_b32 v22, s35, v22")
        A(f"v_add_u32 v21, s36, v21")
        A(f"v_xor_b32 v23, v22, v18\nv_lshlrev_b32 v23, 1, v23\nv_or_b32 v23, v23, v17\nv_lshlrev_b32 v23, 4, v23")
        A(f"v_lshlrev_b32 v24, 13, v21\nv_add_u32 v24, v24, v23\nv_add_u32 v24, s40, v24")
        A(f"v_subrev_u32 v{VWQ+j}, {j*1024}, v24" if j else f"v_mov_b32 v{VWQ+j}, v24")
        A(f"v_xor_b32 v23, v22, v19\nv_lshlrev_b32 v23, 1, v23\nv_or_b32 v23, v23, v17\nv_lshlrev_b32 v23, 4, v23")
        A(f"v_lshlrev_b32 v24, 5, v20\nv_add_u32 v24, v24, v21\nv_mul_u32_u24 v24, 3584, v24\nv_add_u32 v24, v24, v23\nv_add_u32 v24, s41, v24")
        A(f"v_add_u32 v{VW1+j}, {0x100000-j*1024}, v24\nv_subrev_u32 v{VW1+j}, 0x100000, v{VW1+j}" if j else f"v_mov_b32 v{VW1+j}, v24")
    pro=dma_wq(0,0)+dma_wq(1,1)+dma_wq(2,2)+dma_wq(3,3)+dma_wq(4,4)+dma_wq(5,5)
    for x in pro: A(x)
    A("v_lshrrev_b32 v16, 3, v1\nv_and_b32 v18, 7, v1\nv_lshrrev_b32 v18, 1, v18\nv_lshrrev_b32 v19, 4, v1")
    A("v_xor_b32 v18, v18, v19\nv_lshlrev_b32 v18, 1, v18\nv_or_b32 v18, v18, v17\nv_lshlrev_b32 v18, 4, v18")
    A("s_lshl_b32 s35, s24, 5\nv_add_u32 v16, s35, v16\nv_mul_u32_u24 v16, 896, v16\nv_add_u32 v16, v16, v18")
    for j in range(4): A(f"v_add_u32 v{VWO+j}, {j*(7168-1024)}, v16")
    A(f"v_mov_b32 v{VLDS[0]}, v{VL16}\nv_add_u32 v{VLDS[1]}, 0x10000, v{VL16}")
    A("v_lshrrev_b32 v16, 2, v14\nv_and_b32 v17, 3, v14")
    A("v_lshlrev_b32 v18, 3, v13\nv_add_u32 v18, v18, v16\nv_lshlrev_b32 v18, 9, v18\nv_lshlrev_b32 v19, 3, v17\nv_add_u32 v18, v18, v19")
    A("v_and_b32 v20, 1, v13\nv_lshlrev_b32 v20, 2, v20\nv_or_b32 v20, v20, v16")
    for c in range(8):
        A(f"v_xor_b32 v21, {c}, v20\nv_lshlrev_b32 v21, 5, v21\nv_add_u32 v{WB[0]+c}, v18, v21\nv_add_u32 v{WB[1]+c}, 0x10000, v{WB[0]+c}")
    A("v_lshlrev_b32 v18, 2, v13\nv_add_u32 v18, v18, v16")
    A("v_lshrrev_b32 v20, 1, v18\nv_and_b32 v20, 3, v20\nv_lshlrev_b32 v18, 7, v18\nv_add_u32 v18, v18, v19")
    for mb in range(4):
        A(f"v_xor_b32 v21, {mb}, v20\nv_lshlrev_b32 v21, 5, v21\nv_add_u32 v{OBASE[0]+mb}, v18, v21\nv_add_u32 v{OBASE[1]+mb}, 0x10000, v{OBASE[0]+mb}")
    A(f"v_add_u32 v{VV}, s32, v{VL16}\nv_add_u32 v{VK}, 0x10000, v{VV}\nv_add_u32 v{VV}, 0x4000, v{VV}")
    A(f"v_lshlrev_b32 v16, 2, v13\nv_sub_u32 v{VD0}, v14, v16\ns_lshl_b32 s35, s24, 5\nv_add_u32 v{VD0}, s35, v{VD0}")
    A(f"v_mov_b32 v{VNINF}, 0xff800000")
    A(f"s_lshl_b32 s33, s25, 21\ns_add_u32 s33, s33, {WS_KV-65536}")
    A("s_mov_b32 s34, s26")
    A("s_mov_b32 s40, 0x3db8aa3b\ns_mov_b32 s41, 0x3db8aa3b")
    A("s_mov_b32 s64, s40\ns_mov_b32 s65, s41")
    P=[]
    for f in range(7):
        ph=Phase(f"wq{f}"); add_wq(ph,(2*f)%8,2*f); add_wq(ph,(2*f+1)%8,2*f+1); P.append(ph)
    for f in range(3):
        ph=Phase(f"w1{f}"); add_w1(ph,(14+2*f)%8,2*f); add_w1(ph,(15+2*f)%8,2*f+1); P.append(ph)
    ph=Phase("w1s"); add_w1(ph,4,6); nW=len(ph.mf); add_S(ph,5,240,False); P.append(ph)
    for f in range(4): P[f].dma=dma_wq(2*(f+3),(2*(f+3))%8)+dma_wq(2*(f+3)+1,(2*(f+3)+1)%8)
    for f in range(3): P[4+f].dma=dma_w1(2*f,(14+2*f)%8)+dma_w1(2*f+1,(15+2*f)%8)
    P[7].dma=dma_w1(6,4)+dma_kv(5,None)
    P[8].dma=dma_kv(6,None); P[9].dma=dma_kv(0,1); P[10].dma=dma_kv(2,3)
    QV=[]
    for s in range(8):
        for qb in range(2):
            a=O(2*s,qb); b=O(2*s+1,qb)
            for r in (a,a+2,b,b+2): QV.append((f"v_pk_mul_f32 v[{r}:{r+1}], v[{r}:{r+1}], s[64:65]",1))
            QV+= [(f"v_cvt_pk_bf16_f32 v{a}, v{a}, v{a+1}",1),(f"v_cvt_pk_bf16_f32 v{a+1}, v{a+2}, v{a+3}",1),(f"v_cvt_pk_bf16_f32 v{a+2}, v{b}, v{b+1}",1),(f"v_cvt_pk_bf16_f32 v{a+3}, v{b+2}, v{b+3}",1)]
            QV+= [(f"v_accvgpr_write_b32 a{QF+8*s+4*qb+k}, v{a+k}",1) for k in range(4)]
    P[7].valu=QV[:64]; P[7].valu_lo=4; P[8].valu=QV[64:128]; P[9].valu=QV[128:]
    HV=[(f"v_sub_f32 v14, 1.0, v{VG[0]}",1,nW+2),(f"v_mov_b32 v15, v14",1),(f"v_sub_f32 v74, 1.0, v{VG[1]}",1),(f"v_mov_b32 v75, v74",1)]
    for u in range(4):
        for qb in range(2):
            sc="v[14:15]" if qb==0 else "v[74:75]"
            for half in range(2):
                fb=2*u+half; dsta=HF+8*u+4*qb+2*half
                if fb==7:
                    HV+=[(f"v_accvgpr_write_b32 a{dsta}, 0",1),(f"v_accvgpr_write_b32 a{dsta+1}, 0",1)]; continue
                a=FACC+8*fb+4*qb
                HV+=[(f"v_pk_mul_f32 v[{a}:{a+1}], v[{a}:{a+1}], {sc}",1),(f"v_pk_mul_f32 v[{a+2}:{a+3}], v[{a+2}:{a+3}], {sc}",1),
                     (f"v_cvt_pk_bf16_f32 v{a}, v{a}, v{a+1}",1),(f"v_cvt_pk_bf16_f32 v{a+1}, v{a+2}, v{a+3}",1),
                     (f"v_pk_max_i16 v{a}, v{a}, 0",1),(f"v_pk_max_i16 v{a+1}, v{a+1}, 0",1),
                     (f"v_accvgpr_write_b32 a{dsta}, v{a}",1),(f"v_accvgpr_write_b32 a{dsta+1}, v{a+1}",1)]
    P[10].valu=HV; P[10].valu_lo=nW+2
    def kvd(u,k=True,v=True):
        pr=(u+6)%4
        return dma_kv(2*pr if k else None, 2*pr+1 if v else None)
    a0=attn_phase(0,True,False,False,True,kvd(0),"a0s")
    an=[attn_phase(u,True,True,False,False,kvd(u),f"an{u}") for u in range(4)]
    a04=attn_phase(0,True,False,False,True,kvd(0,k=False),"a04")
    items=[(0,0),(0,1)]
    for sl in range(1,7):
        items+= [(sl,2),(sl,0),(sl,1)]
    assert len(items)==20
    def outd(k):
        pr=k%4
        return dma_out(*items[2*k],2*pr)+dma_out(*items[2*k+1],2*pr+1)
    am=[attn_phase(0,True,True,True,False,kvd(0,k=False),"am0"),
        attn_phase(1,True,True,True,False,dma_out(0,2,6)+dma_kv(None,7),"am1"),
        attn_phase(2,True,True,True,False,outd(0),"am2"),
        attn_phase(3,False,True,True,False,outd(1),"am3")]
    ACC=[16,48]
    fin=Phase("fin"); add_PV(fin,7,PB[1]); add_out(fin,6,2,ACC[0],True); fin.dma=outd(2)
    FV=[]
    class L(list):
        def __call__(s,t):
            for x in t.split("\n"): s.append((x,1))
    T=L()
    ln=LB[1]
    for qb in range(2):
        sc=72+2*qb
        T(f"v_add_f32 v{sc}, v{ln+2*qb}, v{ln+2*qb+1}")
        xmax(T,sc,13,"v_add_f32")
        T(f"v_rcp_f32 v{sc}, v{sc}\ns_nop 0\nv_mul_f32 v{sc}, v{sc}, v{VG[qb]}\nv_mov_b32 v{sc+1}, v{sc}")
    FV+=list(T)
    for s in range(8):
        for qb in range(2):
            a=O(2*s,qb); b=O(2*s+1,qb); sc=f"v[{72+2*qb}:{73+2*qb}]"
            for kk,r in enumerate((a,a+2,b,b+2)): FV.append((f"v_pk_mul_f32 v[{r}:{r+1}], v[{r}:{r+1}], {sc}",1,4*s+9))
            FV+= [(f"v_cvt_pk_bf16_f32 v{a}, v{a}, v{a+1}",1),(f"v_cvt_pk_bf16_f32 v{a+1}, v{a+2}, v{a+3}",1),(f"v_cvt_pk_bf16_f32 v{a+2}, v{b}, v{b+1}",1),(f"v_cvt_pk_bf16_f32 v{a+3}, v{b+2}, v{b+3}",1)]
    fin.valu=FV; fin.valu_hi=56
    OP=[]
    started={0}
    def epi(sl):
        acc=ACC[sl&1]; out=[f"s_add_u32 s35, s42, {sl*4096}"]
        for pp in range(2):
            for qb in range(2):
                a=acc+16*pp+4*qb; b=a+8
                out+= [f"v_cvt_pk_bf16_f32 v{a}, v{a}, v{a+1}",f"v_cvt_pk_bf16_f32 v{a+1}, v{a+2}, v{a+3}",f"v_cvt_pk_bf16_f32 v{a+2}, v{b}, v{b+1}",f"v_cvt_pk_bf16_f32 v{a+3}, v{b+2}, v{b+3}",
                       f"buffer_store_dwordx4 v[{a}:{a+3}], v{VL16}, s[12:15], s35 offen offset:{(pp*2+qb)*1024}"+(" sc1" if OPT.get("sc1") else "")]
        return out
    epi_at={1:0,3:1,4:2,6:3,7:4,9:5}
    for k in range(10):
        ph=Phase(f"o{k}")
        for h in range(2):
            sl,kind=items[2*k+h]
            add_out(ph,2*(k%4)+h,kind,ACC[sl&1],sl not in started); started.add(sl)
        d=outd(k+3) if k+3<10 else []
        if k in epi_at: d=d+epi(epi_at[k])
        ph.dma=d; OP.append(ph)
    A("s_waitcnt vmcnt(16)\ns_barrier")
    fc=0
    for f in range(npre(P[0])):
        for t in P[0].frags[f]: A(t.format(**fr(f)))
    def nextfc(fc,ph): return (fc+len(ph.frags)+F-1)//F*F if False else fc+len(ph.frags)
    prevn=8
    seq=P+[None]
    si=1
    def st():
        nonlocal si
        x=stamp(si); si+=1; return x
    for k,ph in enumerate(P):
        last=(k==len(P)-1)
        fcn=fc+len(ph.frags)
        if last: fcn=(fcn+F-1)//F*F
        nv=nvm(ph.dma)
        nx=P[k+1] if not last else a0
        emit_phase(A,ph,fc,nx,fcn,nv+prevn,stampi=(st() if k in (6,) else None))
        prevn=nv; fc=fcn
    A("s_nop 7")
    A(f"s_cmp_eq_u32 s34, 0\ns_cselect_b32 s35, 0, 0x1000\nv_add_u32 v{VD}, s35, v{VD0}\ns_nop 1")
    for ins,c in mask_ops(240): A(ins)
    for qb in range(2):
        rowmax(A,240,qb,13,14)
        for r in range(4): A(f"v_sub_f32 v{NEGM+4*qb+r}, 0, v13")
        for kvb in range(2):
            for r in range(4): A(f"v_sub_f32 v{SB[0]+8*kvb+4*qb+r}, v{240+8*kvb+4*qb+r}, v13")
    for r in range(4): A(f"v_mov_b32 v{LB[1]+r}, 0")
    if k1.STAMPS: A(st()); A("s_waitcnt lgkmcnt(0)") if False else None
    fcA=fc
    assert fcA%F==0
    A("s_cmp_eq_u32 s34, 0\ns_cbranch_scc1 K2_n4")
    emit_phase(A,a0,fcA,an[1],fcA,nvm(a0.dma)+prevn)
    A("s_branch K2_an1\n.p2align 6\nK2_loop:")
    for u in range(4):
        if u==1: A("K2_an1:")
        emit_phase(A,an[u],fcA,an[(u+1)%4],fcA,16)
    A("s_sub_u32 s34, s34, 1\ns_cmp_lg_u32 s34, 0\ns_cbranch_scc1 K2_loop")
    emit_phase(A,am[0],fcA,am[1],fcA,nvm(am[0].dma)+8)
    A("K2_am1:")
    chain=am[1:]+[fin]+OP
    prevn=nvm(am[0].dma)
    for k,ph in enumerate(chain):
        last=(k==len(chain)-1)
        nv=nvm(ph.dma)
        fcn=fcA if k<3 else (fc+len(ph.frags))
        fcur=fcA if k<=3 else fc
        if k==3: fcn=fcA+len(ph.frags)
        emit_phase(A,ph,fcur,None if last else chain[k+1],fcn,nv+prevn,barrier=not last,stampi=(st() if ph.name in("am3","fin") else None))
        if ph.name=="am3":
            A(f"s_lshl_b32 s42, s25, 4\ns_add_u32 s42, s42, s26\ns_lshl_b32 s42, s42, 2\ns_add_u32 s42, s42, s24\ns_mul_i32 s42, s42, {7*4096}\ns_add_u32 s42, s42, {WS_PART}")
        prevn=nv; fc=fcn
    A("s_nop 7")
    for x in epi(6): A(x)
    if k1.STAMPS:
        A("s_waitcnt vmcnt(0)"); A(st())
        A(f"s_waitcnt lgkmcnt(0)\ns_cmp_lg_u32 s24, 0\ns_cbranch_scc1 K2_st")
        A(f"s_lshl_b32 s58, s2, 6\ns_add_u32 s58, s58, {WS_STAMP+16384}\nv_mov_b32 v2, s58\ns_mov_b64 exec, 1")
        for i in range(si): A(f"v_mov_b32 v3, s{STB+2*i}\nbuffer_store_dword v3, v2, s[12:15], 0 offen offset:{4*i}")
        A("s_mov_b64 exec, -1\nK2_st:")
    A("s_endpgm")
    A("K2_n4:")
    emit_phase(A,a04,fcA,am[1],fcA,nvm(a04.dma)+nvm(P[10].dma))
    A("s_branch K2_am1")
    for lbl,p,hs,back in RARE: rare(A,lbl,p,hs,back)
    A("K2_end:\ns_endpgm")

def k3(A,name="k3_kernel"):
    A(f".globl {name}\n.p2align 8\n.type {name},@function\n{name}:")
    A("s_cmp_ge_u32 s2, 448\ns_cbranch_scc1 K3_end")
    import os
    K3S=bool(int(os.environ.get("STAMPS","0")))
    if K3S: A("s_memrealtime s[22:23]")
    A("s_load_dwordx2 s[12:13], s[0:1], 96\ns_load_dwordx2 s[4:5], s[0:1], 80")
    srd(A,12,WS_SIZE); srd(A,4,2048*448*2)
    A("v_and_b32 v1, 63, v0\nv_lshrrev_b32 v2, 6, v0\ns_nop 0\nv_readfirstlane_b32 s16, v2")
    A("s_lshl_b32 s17, s2, 2\ns_add_u32 s17, s17, s16\ns_lshl_b32 s17, s17, 10")
    A(f"s_add_u32 s17, s17, {WS_PART}\nv_lshlrev_b32 v2, 4, v1")
    A("s_waitcnt lgkmcnt(0)")
    HS=16*4*7*4096
    for h in range(16):
        A(f"buffer_load_dwordx4 v[{8+4*h}:{11+4*h}], v2, s[12:15], s17 offen")
        if h<15: A(f"s_add_u32 s17, s17, {HS}")
    A("s_mul_i32 s18, s2, 9363\ns_lshr_b32 s18, s18, 16")
    A("s_mul_i32 s19, s18, 7\ns_sub_u32 s19, s2, s19")
    A("s_lshl_b32 s18, s18, 5\ns_and_b32 s20, s16, 1\ns_lshl_b32 s20, s20, 4\ns_add_u32 s18, s18, s20")
    A("s_lshl_b32 s19, s19, 6\ns_lshr_b32 s20, s16, 1\ns_lshl_b32 s20, s20, 5\ns_add_u32 s19, s19, s20\ns_lshl_b32 s19, s19, 1")
    A("v_and_b32 v3, 15, v1\nv_add_u32 v3, s18, v3\nv_mul_u32_u24 v3, 896, v3\nv_lshrrev_b32 v4, 4, v1\nv_lshlrev_b32 v4, 3, v4\nv_add_u32 v3, v3, v4\nv_add_u32 v3, s19, v3")
    for k in range(8): A(f"v_mov_b32 v{72+k}, 0")
    for h in range(16):
        A(f"s_waitcnt vmcnt({15-h})")
        for k in range(4):
            A(f"v_lshlrev_b32 v80, 16, v{8+4*h+k}\nv_and_b32 v81, 0xffff0000, v{8+4*h+k}\nv_pk_add_f32 v[{72+2*k}:{73+2*k}], v[{72+2*k}:{73+2*k}], v[80:81]")
    for k in range(4): A(f"v_cvt_pk_bf16_f32 v{84+k}, v{72+2*k}, v{73+2*k}")
    A("buffer_store_dwordx2 v[84:85], v3, s[4:7], 0 offen\nbuffer_store_dwordx2 v[86:87], v3, s[4:7], 0 offen offset:32")
    if K3S:
        A("s_waitcnt vmcnt(0)\ns_memrealtime s[24:25]\ns_waitcnt lgkmcnt(0)")
        A(f"s_lshl_b32 s26, s2, 3\ns_add_u32 s26, s26, {WS_STAMP+0x10000}\nv_mov_b32 v2, s26\nv_mov_b32 v84, s22\nv_mov_b32 v85, s24\ns_mov_b64 exec, 1\nbuffer_store_dwordx2 v[84:85], v2, s[12:15], 0 offen")
    A("K3_end:\ns_endpgm")
```

```python
from asmlib import *
from stream import *
import k1 as K1M, k2 as K2M
from k2 import *
from k1 import srd, WS_KV, WS_PART, WS_SIZE, WS_STAMP, WSB
WS_FLAG=0x2200000+WSB
WS_Q=0x5000000+WSB
WS_O=0x6000000+WSB
LDS_GW=131072
STAMPS=False
OPT={}
STL=["start","k1end","inend","fin","end"]
def SL(A,loc):
    if STAMPS and loc in STL: A(st(STL.index(loc)))
def st(i): return f"{'s_memtime' if OPT.get('cyc') else 's_memrealtime'} s[{92+2*i}:{93+2*i}]" if STAMPS else None
sNON,sMODE,sROLE,sP1,sP2,sKV2="s66","s67","s88","s89","s90","s3"
SPINS=[]
def spin(A,lbl,back,vaddr,soff,vdst):
    SPINS.append((lbl,back,vaddr,soff,vdst))
def emit_spins(A):
    for lbl,back,vaddr,soff,vdst in SPINS:
        ad=f"v{vaddr}, s[12:15], {soff} offen" if vaddr is not None else f"off, s[12:15], {soff}"
        A(f"{lbl}:\ns_mov_b32 s59, 0\n{lbl}_l:\ns_sleep 1\nbuffer_load_dword v{vdst}, {ad} sc1\ns_waitcnt vmcnt(0)")
        A(f"v_cmp_ne_u32 vcc, {sNON}, v{vdst}\ns_add_u32 s59, s59, 1\ns_cmp_ge_u32 s59, 0x8000\ns_cbranch_scc1 {back}")
        A(f"s_nop 1\ns_cbranch_vccnz {lbl}_l\ns_branch {back}")
def pend(reg,tag):
    return [f"s_cmp_eq_u32 {reg}, 0",f"s_cbranch_scc1 PS_{tag}","s_mov_b64 exec, 1",f"v_mov_b32 v127, {sNON}",
            f"buffer_store_dword v127, off, s[12:15], {reg} sc1","s_mov_b64 exec, -1",f"s_mov_b32 {reg}, 0",f"PS_{tag}:"]
def add_w1g(ph,slot,it):
    for k2_ in range(2):
        ks=2*it+k2_
        for fb in range(8):
            if fb<7: f=ph.frag(tr_frag_w(slot,fb,k2_*256))
            else: f=ph.frag([f"ds_read_b128 {{d4}}, v{VGW} offset:{ks*64}"])
            for qb in range(2):
                d=vr(FACC+8*fb+4*qb,4); x=ar(XF+8*ks+4*qb,4)
                ph.mfma(f,f"{MF} {d}, {{A}}, {x}, {d if ks else 0}")
VGW=124
def mega(A,name="mega_kernel"):
    K2M.SQ,K2M.S1,K2M.SO,K2M.S2,K2M.SX=68,72,76,80,16
    K2M.KVSC=" sc1" if not OPT.get("nosc1ld") else ""
    K2M.OPT["sc1"]=1
    RARE.clear(); SPINS.clear()
    SC=" sc1"
    A(f".globl {name}\n.p2align 8\n.type {name},@function\n{name}:")
    A(f"s_cmp_lt_u32 s2, 256\ns_cbranch_scc1 MG_go\ns_endpgm\nMG_go:")
    SL(A,"start")
    for d,o in ((4,8),(32,24),(34,32),(12,96),(16,0),(20,72),(68,16),(72,56),(76,40),(80,64),(84,88)): A(f"s_load_dwordx2 s[{d}:{d+1}], s[0:1], {o}")
    A("s_memrealtime s[44:45]")
    A("v_and_b32 v1, 63, v0\nv_lshrrev_b32 v2, 6, v0")
    A("s_and_b32 s36, s2, 7\ns_lshr_b32 s37, s2, 3")
    A("v_readfirstlane_b32 s24, v2")
    A("s_lshr_b32 s38, s37, 3\ns_and_b32 s27, s37, 7")
    A("s_and_b32 s39, s38, 1\ns_lshl_b32 s25, s36, 1\ns_add_u32 s25, s25, s39")
    A("s_lshr_b32 s26, s38, 1")
    srd(A,4,4194304); srd(A,12,WS_SIZE); srd(A,16,1835008); srd(A,20,896)
    srd(A,68,448*8192); srd(A,72,448*3584); srd(A,76,4096*896); srd(A,80,1792*896); srd(A,84,256)
    vC=[4,5,6,7]; vW=[8,9,10,11]; wb=list(range(12,20)); cb=[[20,21],[22,23]]
    vL16=24
    A("v_lshlrev_b32 v24, 4, v1")
    A("s_lshl_b32 s40, s27, 8\ns_lshl_b32 s41, s24, 6\ns_add_u32 s40, s40, s41\ns_lshl_b32 s40, s40, 11")
    A("v_lshrrev_b32 v25, 3, v1\nv_lshlrev_b32 v25, 11, v25\nv_add_u32 v25, s40, v25")
    A("v_and_b32 v26, 7, v1\nv_lshrrev_b32 v27, 4, v1\nv_xor_b32 v26, v26, v27")
    for j in range(4):
        if j&1: A("v_xor_b32 v27, 4, v26")
        else: A("v_mov_b32 v27, v26")
        A(f"v_lshlrev_b32 v27, 4, v27\nv_add_u32 v27, v27, v25\nv_add_u32 v{vC[j]}, {j*(16384-1024)}, v27")
    A("v_lshrrev_b32 v25, 5, v1")
    A("v_and_b32 v26, 31, v1\nv_lshrrev_b32 v26, 1, v26")
    A("v_and_b32 v28, 1, v1")
    A("s_and_b32 s41, s24, 1\ns_lshl_b32 s41, s41, 2")
    A("s_lshl_b32 s42, s24, 16\ns_lshl_b32 s43, s25, 9\ns_add_u32 s42, s42, s43")
    for j in range(4):
        A(f"v_add_u32 v27, {2*j}, v25\nv_and_b32 v29, 3, v27\nv_or_b32 v29, s41, v29")
        A(f"v_xor_b32 v29, v29, v26\nv_lshlrev_b32 v29, 1, v29\nv_or_b32 v29, v29, v28\nv_lshlrev_b32 v29, 4, v29")
        A(f"v_lshlrev_b32 v27, 13, v27\nv_add_u32 v27, v27, v29\nv_add_u32 v27, s42, v27")
        if j: A(f"v_subrev_u32 v{vW[j]}, {j*1024}, v27")
        else: A(f"v_mov_b32 v{vW[j]}, v27")
    A("s_lshl_b32 s28, s24, 13\ns_lshl_b32 s29, s24, 12\ns_add_u32 s29, s29, 98304")
    def dma_c(q,half):
        slot=q%3
        out=[f"s_add_u32 m0, s28, {slot*32768+half*4096}", f"s_mov_b32 s30, {q*128+half*65536}"]
        out+=[f"buffer_load_dwordx4 v{vC[j]}, s[4:7], s30 offen offset:{j*1024} lds" for j in range(4)]
        return out
    def dma_w(p):
        slot=p%4
        out=[f"s_add_u32 m0, s29, {slot*16384}", f"s_mov_b32 s31, {p*32*8192}"]
        out+=[f"buffer_load_dwordx4 v{vW[j]}, s[8:11], s31 offen offset:{j*1024} lds" for j in range(4)]
        return out
    A("s_waitcnt lgkmcnt(0)")
    A("s_cmp_eq_u32 s26, 0\ns_cselect_b32 s8, s32, s34\ns_cselect_b32 s9, s33, s35")
    srd(A,8,8388608)
    for x in dma_c(0,0)+dma_w(0)+dma_c(0,1)+dma_w(1): A(x)
    A("s_or_b32 s44, s44, 1\ns_lshl_b32 s41, s36, 2\ns_cmp_eq_u32 s37, 0\ns_cselect_b32 s42, 1, 0\ns_cmp_eq_u32 s24, 0\ns_cselect_b32 s42, s42, 0\ns_cmp_eq_u32 s42, 0\ns_cbranch_scc1 MG_nolead")
    A("s_mov_b64 exec, 1\nv_mov_b32 v3, s44\nbuffer_store_dword v3, off, s[84:87], s41 sc1\ns_mov_b64 exec, -1\nMG_nolead:")
    A("v_lshrrev_b32 v25, 4, v1\nv_and_b32 v26, 15, v1")
    A("v_lshrrev_b32 v27, 2, v26\nv_and_b32 v28, 3, v26")
    A("v_lshlrev_b32 v29, 3, v25\nv_add_u32 v29, v29, v27\nv_lshlrev_b32 v29, 9, v29")
    A("v_lshlrev_b32 v28, 3, v28\nv_add_u32 v29, v29, v28")
    A("v_and_b32 v30, 1, v25\nv_lshlrev_b32 v30, 2, v30\nv_or_b32 v30, v30, v27")
    A("s_lshr_b32 s41, s24, 1\ns_lshl_b32 s41, s41, 8\ns_add_u32 s41, s41, 98304")
    A("v_add_u32 v29, s41, v29")
    for c in range(8):
        A(f"v_xor_b32 v31, {c}, v30\nv_lshlrev_b32 v31, 5, v31\nv_add_u32 v{wb[c]}, v29, v31")
    A("v_lshrrev_b32 v27, 1, v26\nv_xor_b32 v27, v27, v25")
    A("s_and_b32 s41, s24, 1\ns_lshl_b32 s41, s41, 14")
    A("v_lshlrev_b32 v28, 7, v26\nv_add_u32 v28, s41, v28")
    for ks in range(2):
        A(f"v_xor_b32 v29, {4*ks}, v27\nv_lshlrev_b32 v29, 4, v29\nv_add_u32 v{cb[ks][0]}, v29, v28\nv_add_u32 v{cb[ks][1]}, 0x10000, v{cb[ks][0]}")
    for x in dma_c(1,0)+dma_c(1,1)+dma_w(2)+dma_w(3)+dma_c(2,0): A(x)
    A("s_waitcnt vmcnt(20)\ns_barrier")
    AC0=224
    def acc(i,j):
        n=i*8+j
        return (f"v[{32+4*n}:{35+4*n}]", 32+4*n, "v") if n<56 else (f"a[{AC0+4*(n-56)}:{AC0+3+4*(n-56)}]",AC0+4*(n-56),"a")
    def reads(p, typ):
        s_=64*(p&1)
        Wd = s_ if typ==0 else s_+32
        Cd = s_+32 if typ==0 else s_
        q=p>>1; ks=p&1; slot=q%3
        out=[]
        for f in range(8):
            base=cb[ks][1 if slot==2 else 0]; off=(32768 if slot==1 else 0)+f*2048
            out.append(f"ds_read_b128 a[{Cd+4*f}:{Cd+4*f+3}], v{base} offset:{off}")
            o=(p%4)*16384
            out.append(f"ds_read_b64_tr_b16 a[{Wd+4*f}:{Wd+4*f+1}], v{wb[f]} offset:{o}")
            out.append(f"ds_read_b64_tr_b16 a[{Wd+4*f+2}:{Wd+4*f+3}], v{wb[f]} offset:{o+2048}")
        return out
    def G(t): return (t,1)
    EX={p:[] for p in range(32)}
    XD={p:[] for p in range(32)}
    def kvbase(typ):
        o=[f"s_lshl_b32 s40, s25, 21","s_lshl_b32 s41, s27, 18","s_add_u32 s40, s40, s41",f"s_add_u32 s40, s40, {WS_KV+(16384 if typ else 0)}",
           "s_and_b32 s41, s24, 1","s_lshl_b32 s41, s41, 17","s_add_u32 s40, s40, s41","s_lshr_b32 s41, s24, 1",f"s_lshl_b32 s41, s41, {13 if typ else 12}","s_add_u32 s40, s40, s41"]
        St,Sa,Sb=((1024,32768,8192),(32768,2048,1024))[typ]
        o+=[f"s_mov_b32 s41, {Sb}",f"s_mov_b32 s42, {Sa-Sb}",f"s_mov_b32 s43, {(St-3*Sa-Sb)&0xffffffff}"]
        return o
    EX[11]=["s_and_b32 s47, s2, 7","s_lshr_b32 s48, s2, 3","s_and_b32 s25, s48, 1","s_lshl_b32 s47, s47, 1","s_add_u32 s25, s25, s47",
           "s_lshr_b32 s26, s48, 1","s_lshl_b32 s27, s26, 7","s_lshl_b32 s32, s24, 12","s_mov_b32 s36, 14336",
           "s_lshl_b32 s47, s24, 5","s_add_u32 s47, s47, s27",
           "v_lshrrev_b32 v2, 4, v1","v_and_b32 v3, 15, v1","v_add_u32 v3, s47, v3","v_mul_u32_u24 v0, 896, v3","v_lshlrev_b32 v2, 4, v2","v_add_u32 v0, v0, v2"]
    def xld(ks,qb): return f"buffer_load_dwordx4 {ar(XF+8*ks+4*qb,4)}, v0, s[16:19], {'s36' if qb else '0'} offen offset:{ks*64}"
    for ks in range(12): XD[13+ks]+=[xld(ks,0),xld(ks,1)]
    if not OPT.get("nopf"):
        EX[0]=["s_lshl_b32 s47, s24, 12","s_lshl_b32 s48, s2, 14","s_add_u32 s47, s47, s48","v_lshlrev_b32 v25, 6, v1","v_add_u32 v25, s47, v25",
               f"v_subrev_u32 v26, {32*16384}, v25",f"v_subrev_u32 v27, {112*16384}, v25",f"v_subrev_u32 v28, {158*16384}, v25",
               "v_lshrrev_b32 v29, 5, v1","v_lshlrev_b32 v29, 5, v29","v_lshrrev_b32 v30, 3, v1","v_and_b32 v2, 3, v30","v_add_u32 v29, v29, v2",
               "s_lshl_b32 s47, s24, 6","s_lshl_b32 s48, s27, 2","s_add_u32 s47, s47, s48","v_add_u32 v29, s47, v29","v_lshlrev_b32 v29, 13, v29",
               "v_and_b32 v3, 7, v1","v_lshlrev_b32 v3, 6, v3","s_lshl_b32 s48, s25, 9","v_add_u32 v29, s48, v29","v_add_u32 v29, v29, v3",
               "v_and_b32 v30, 1, v30","s_lshl_b32 s47, s27, 8","s_lshl_b32 s48, s25, 4","s_add_u32 s47, s47, s48","s_lshl_b32 s48, s26, 3","s_add_u32 s47, s47, s48",
               "s_lshl_b32 s48, s24, 1","s_add_u32 s47, s47, s48","v_add_u32 v30, s47, v30","v_lshlrev_b32 v30, 11, v30","v_add_u32 v30, v30, v3",
               "v_lshrrev_b32 v2, 4, v1","v_lshlrev_b32 v2, 9, v2","v_add_u32 v30, v30, v2"]
        def tch(v,srd_,so="0"): return f"buffer_load_dword v31, v{v}, s[{srd_}:{srd_+3}], {so} offen"
        def tw(n): return [f"s_mov_b32 s44, {n*0x200000}", tch(29,8,"s44")]
        if not OPT.get("nopf1"):
            XD[1]+=[tch(30,4)]+tw(0); XD[2]+=tw(1); XD[8]+=tw(2); XD[14]+=tw(3)
        XD[2]+=[tch(25,16)]; XD[3]+=[tch(25,68)]; XD[4]+=[tch(27,72)]; XD[5]+=[tch(26,76)]; XD[6]+=[tch(28,80)]
    EX[12]=["s_and_b32 s47, s2, 7","s_lshr_b32 s48, s2, 3","s_lshl_b32 s47, s47, 7",f"s_add_u32 s91, s47, {WS_FLAG}",
            "s_lshl_b32 s48, s48, 2","s_add_u32 s48, s48, s91",f"s_cmp_eq_u32 s24, 0\ns_cselect_b32 {sP1}, s48, 0",
            "s_mov_b32 s37, 0x53800000","s_mul_i32 s38, s25, %d"%(256*896),"s_mul_i32 s39, s25, %d"%(112*896),
            "s_mov_b32 s64, 0x3db8aa3b","s_mov_b32 s65, 0x3db8aa3b"]
    EX[13]=[f"s_mov_b32 {sROLE}, 0",f"s_cmp_le_u32 s26, {OPT.get('tk',5)}\ns_cselect_b32 {sROLE}, 1, {sROLE}",f"s_cmp_ge_u32 s26, {15-OPT.get('tk',5)}\ns_cselect_b32 {sROLE}, 2, {sROLE}"]
    if OPT.get("nohelp"): EX[13].append(f"s_mov_b32 {sROLE}, 0")
    EX[13]+=["s_sub_u32 s47, 15, s26","s_min_u32 s47, s47, s26","s_lshl_b32 s48, s47, 2","s_sub_i32 s48, %d, s48"%OPT.get("g0",24),"s_max_i32 s48, s48, %d"%OPT.get("gmin",8),
             f"s_cmp_eq_u32 {sROLE}, 0\ns_cselect_b32 s48, 0, s48","s_add_u32 s49, s26, 1","s_lshl_b32 s49, s49, 2",
             f"s_lshl_b32 {sKV2}, s25, 21",f"s_add_u32 {sKV2}, {sKV2}, {WS_KV-65536}",
             f"s_cmp_eq_u32 {sROLE}, 1\ns_cselect_b32 {sMODE}, 1, 0\ns_cselect_b32 s50, 0, s48","s_sub_u32 s51, s49, s50",
             f"s_cmp_eq_u32 {sROLE}, 1\ns_cselect_b32 s51, s48, s51","s_lshr_b32 s34, s51, 2","s_sub_u32 s34, s34, 1",
             "s_lshl_b32 s50, s50, 15",f"s_add_u32 s33, {sKV2}, s50"]
    EX[15]=["v_lshrrev_b32 v25, 5, v1","v_and_b32 v26, 1, v1","v_and_b32 v27, 31, v1","v_lshrrev_b32 v27, 1, v27",
           "s_and_b32 s47, s24, 1","s_lshl_b32 s47, s47, 2","s_lshl_b32 s48, s24, 3","s_lshl_b32 s49, s25, 9"]
    for j in range(4):
        EX[16+j]=[f"v_add_u32 v2, {2*j}, v25","v_and_b32 v3, 3, v2","v_or_b32 v3, s47, v3","v_add_u32 v2, s48, v2",
                "v_xor_b32 v3, v3, v27","v_lshlrev_b32 v3, 1, v3","v_or_b32 v3, v3, v26","v_lshlrev_b32 v3, 4, v3",
                "v_lshlrev_b32 v2, 13, v2","v_add_u32 v2, v2, v3","v_add_u32 v2, s49, v2",
                f"v_subrev_u32 v{28+j}, {j*1024}, v2" if j else f"v_mov_b32 v{28+j}, v2"]
    WQR=[28,29,30,31]
    for it,p in ((2,27),(3,28),(4,29),(5,30)): XD[p]+=dma_wq(it,it,WQR)
    D31=["s_and_b32 s47, s2, 7","s_lshl_b32 s47, s47, 2","buffer_load_dword v2, off, s[84:87], s47 sc1",
         f"s_mov_b32 m0, {LDS_GW}","s_nop 0",f"buffer_load_dwordx4 v24, s[20:23], 0 offen lds"]+dma_wq(0,0,WQR)+dma_wq(1,1,WQR)
    def park(k):
        if k<8: return "v",32+4*k
        if k<14: return "v",64+4*(k-8)
        if k<16: return "v",(120,116)[k-14]
        return "a",4*(k-16)
    def packops(t,j):
        d,r0,_=acc(2*t,j); e,r1,c1=acc(2*t+1,j)
        k=8*t+j; c,dst=park(k); o=[]
        if c1=="a":
            tmp=160+4*(j%2)
            for q in range(4): o.append(f"v_accvgpr_read_b32 v{tmp+q}, a{r1+q}")
            r1=tmp
        w=dst if c=="v" else r0
        o.append(f"v_cvt_pk_bf16_f32 v{w}, v{r0}, v{r0+1}")
        o.append(f"v_cvt_pk_bf16_f32 v{w+1}, v{r0+2}, v{r0+3}")
        o.append(f"v_cvt_pk_bf16_f32 v{w+2}, v{r1}, v{r1+1}")
        o.append(f"v_cvt_pk_bf16_f32 v{w+3}, v{r1+2}, v{r1+3}")
        if c=="a":
            for q in range(4): o.append(f"v_accvgpr_write_b32 a{dst+q}, v{w+q}")
        return o
    SL(A,"pro")
    A("s_cmp_lg_u32 s26, 0\ns_cbranch_scc1 K1_V")
    for typ in range(2):
        if typ==1: A("K1_V:")
        for x in reads(0,typ): A(x)
        A("s_waitcnt lgkmcnt(0)")
        for p in range(32):
            s_=64*(p&1)
            S=Sched()
            for i in range(8):
                for j in range(8):
                    d,_,_=acc(i,j)
                    c = d if p>0 else "0"
                    S.mfma(f"v_mfma_f32_16x16x32_bf16 {d}, a[{s_+4*i}:{s_+4*i+3}], a[{s_+32+4*j}:{s_+32+4*j+3}], {c}")
            def dl(pp):
                D=[]
                if pp+4<32: D+=dma_w(pp+4)
                if pp%2==0:
                    q=pp//2+2
                    if q<16: D+=dma_c(q,1)
                else:
                    q=(pp-1)//2+3
                    if q<16: D+=dma_c(q,0)
                return D+XD[pp]
            D=dl(p)
            if p+1<32 and not OPT.get("k1noread"): S.spread([(x,1) for x in reads(p+1,typ)],0,46)
            S.spread([(x,1) for x in D],2,60)
            ex=EX[p] if p!=10 else kvbase(typ)
            if ex: S.spread([(x,1) for x in ex],2,62)
            rest=[]
            if p==31:
                S.spread([(x,1) for x in D31],0,10)
                pos=12
                for t in range(4):
                    for j in range(8):
                        ready=(2*t+1)*8+j+5
                        for x in packops(t,j):
                            q_=max(pos,ready)
                            while q_<64 and S.cap[q_]<1: q_+=1
                            if q_>=64 or rest: rest.append(x)
                            else: pos=S.place(q_,x,1)
            S.emit(A)
            if p+1<32:
                n=nvm(dl(p))+(nvm(dl(p-1)) if p>0 else 8)
                A(f"s_waitcnt vmcnt({n}) lgkmcnt(0)\ns_barrier")
                SL(A,f"p{p}")
        SL(A,"k1end")
        A("s_nop 7")
        for x in rest: A(x)
        if typ==0: A("s_branch MG_in")
    A("MG_in:")
    SL(A,"epi")
    def pairflag(dst,extra):
        return [f"s_sub_u32 s35, 15, s26",f"s_min_u32 s35, s35, s26",f"s_lshl_b32 {dst}, s25, 3",f"s_add_u32 {dst}, {dst}, s35",f"s_lshl_b32 {dst}, {dst}, 7",f"s_add_u32 {dst}, {dst}, {WS_FLAG+0x1000+extra}"]
    for c in range(4): A(f"v_mov_b32 v{VWQ+c}, v{28+c}")
    A("s_lshr_b32 s47, s24, 1\ns_lshl_b32 s47, s47, 8\ns_add_u32 s47, s47, 98304")
    for c in range(8): A(f"v_subrev_u32 v{WB[0]+c}, s47, v{12+c}")
    for c in range(8): A(f"v_add_u32 v{WB[1]+c}, 0x10000, v{WB[0]+c}")
    A(f"v_lshlrev_b32 v{VL16}, 4, v1")
    A(f"s_cmp_eq_u32 {sROLE}, 2\ns_cselect_b32 s47, 0, 0x7ff00000\nv_add_u32 v126, s47, v{VL16}")
    B=[]
    def b(t):
        nonlocal B
        for x in t.split("\n"): B.append((x,1))
    b("v_lshrrev_b32 v13, 4, v1\nv_and_b32 v14, 15, v1\nv_lshrrev_b32 v16, 2, v14\nv_and_b32 v17, 3, v14\nv_lshlrev_b32 v19, 3, v17")
    b(f"v_mov_b32 v{VLDS[0]}, v{VL16}\nv_add_u32 v{VLDS[1]}, 0x10000, v{VL16}")
    b(f"v_add_u32 v{VV}, s32, v{VL16}\nv_add_u32 v{VK}, 0x10000, v{VV}\nv_add_u32 v{VV}, 0x4000, v{VV}")
    b(f"v_lshlrev_b32 v16, 2, v13\nv_sub_u32 v{VD0}, v14, v16\ns_lshl_b32 s52, s24, 5\nv_add_u32 v{VD0}, s52, v{VD0}")
    b(f"v_mov_b32 v{VNINF}, 0xff800000")
    b(f"v_lshlrev_b32 v{VGW}, 4, v13\nv_add_u32 v{VGW}, {LDS_GW}, v{VGW}")
    b(f"v_and_b32 v{VGW+1}, 31, v1\nv_lshlrev_b32 v{VGW+1}, 2, v{VGW+1}")
    b("v_lshrrev_b32 v16, 5, v1\nv_and_b32 v17, 1, v1\nv_and_b32 v18, 31, v1\nv_lshrrev_b32 v18, 1, v18\nv_and_b32 v19, 7, v18\nv_lshrrev_b32 v20, 4, v1\nv_and_b32 v20, 1, v20")
    b("s_and_b32 s52, s24, 1\ns_lshl_b32 s52, s52, 2\ns_lshl_b32 s53, s24, 3\ns_mul_i32 s54, s25, 224")
    for j in range(4):
        b(f"v_add_u32 v21, {2*j}, v16\nv_and_b32 v22, 3, v21\nv_or_b32 v22, s52, v22\nv_add_u32 v21, s53, v21")
        b(f"v_xor_b32 v23, v22, v19\nv_lshlrev_b32 v23, 1, v23\nv_or_b32 v23, v23, v17\nv_lshlrev_b32 v23, 4, v23")
        b(f"v_lshlrev_b32 v24, 5, v20\nv_add_u32 v24, v24, v21\nv_mul_u32_u24 v24, 3584, v24\nv_add_u32 v24, v24, v23\nv_add_u32 v24, s54, v24")
        b(f"v_subrev_u32 v{VW1+j}, {j*1024}, v24" if j else f"v_mov_b32 v{VW1+j}, v24")
    B1=B; B=[]
    b("v_lshrrev_b32 v16, 2, v14\nv_and_b32 v17, 3, v14\nv_lshlrev_b32 v19, 3, v17")
    b("v_lshlrev_b32 v18, 2, v13\nv_add_u32 v18, v18, v16")
    b("v_lshrrev_b32 v20, 1, v18\nv_and_b32 v20, 3, v20\nv_lshlrev_b32 v18, 7, v18\nv_add_u32 v18, v18, v19")
    for mb in range(4): b(f"v_xor_b32 v21, {mb}, v20\nv_lshlrev_b32 v21, 5, v21\nv_add_u32 v{OBASE[0]+mb}, v18, v21\nv_add_u32 v{OBASE[1]+mb}, 0x10000, v{OBASE[0]+mb}")
    b("v_and_b32 v17, 1, v1")
    b("v_lshrrev_b32 v16, 3, v1\nv_and_b32 v18, 7, v1\nv_lshrrev_b32 v18, 1, v18\nv_lshrrev_b32 v19, 4, v1")
    b("v_xor_b32 v18, v18, v19\nv_lshlrev_b32 v18, 1, v18\nv_or_b32 v18, v18, v17\nv_lshlrev_b32 v18, 4, v18")
    b("s_lshl_b32 s52, s24, 5\nv_add_u32 v16, s52, v16\nv_mul_u32_u24 v16, 896, v16\nv_add_u32 v16, v16, v18")
    for j in range(4): b(f"v_add_u32 v{VWO+j}, {j*(7168-1024)}, v16")
    B2=B; B=B1
    P=[]
    for f in range(7):
        ph=Phase(f"wq{f}"); add_wq(ph,(2*f)%8,2*f); add_wq(ph,(2*f+1)%8,2*f+1); P.append(ph)
    for f in range(3):
        ph=Phase(f"w1{f}"); add_w1g(ph,(14+2*f)%8,2*f); add_w1g(ph,(15+2*f)%8,2*f+1); P.append(ph)
    ph=Phase("w1l"); add_w1g(ph,5,6); P.append(ph)
    for f in range(4): P[f].dma=dma_wq(2*(f+3),(2*(f+3))%8)+dma_wq(2*(f+3)+1,(2*(f+3)+1)%8)
    for f in range(3): P[4+f].dma=dma_w1(2*f,(14+2*f)%8)+dma_w1(2*f+1,(15+2*f)%8)
    nb=len(B); P[0].valu=B[:nb//3]; P[1].valu=B[nb//3:2*nb//3]; P[2].valu=B[2*nb//3:]; P[4].valu=B2[:len(B2)//2]; P[5].valu=B2[len(B2)//2:]
    poll=[f"buffer_load_dword v2, v{VGW+1}, s[12:15], s91 offen sc1"]
    def kvst(k):
        c,r=park(k); j=k%8
        if OPT.get("nokvst"): return []
        return [f"buffer_store_dwordx4 {c}[{r}:{r+3}], v{VL16}, s[12:15], s40 offen"+("" if OPT.get("kvpl") else " sc1"), f"s_add_u32 s40, s40, {'s43' if j==7 else ('s41' if j%2==0 else 's42')}"]
    KC={0:(7,7,6,6,6),1:(5,5,5,5,4,4,4),2:(6,6,5,5,5,5),3:(5,5,5,5,5,5,2),4:(4,4,5,5,5,5,4),5:(6,5,5,5,5,6),6:(4,4,4,4,4,4,4,4),7:(3,3,4,4,4,4,5,5)}[OPT.get("ks",0)]
    KS=[(sum(KC[:i]),sum(KC[:i+1])) for i in range(len(KC))]; assert sum(KC)==32
    PUBK=OPT.get("pubk",6)
    P[0].dma=P[0].dma+[xld(ks,qb) for ks in (12,13) for qb in range(2)]
    for f,(lo_,hi_) in enumerate(KS): P[f].dma=P[f].dma+sum([kvst(k) for k in range(lo_,hi_)],[])
    def qst(f):
        o=[]
        if f%4==0 or f in (6,11): o.append(f"s_add_u32 s58, s57, {(f//4)*4096}")
        o.append(f"buffer_store_dwordx4 {ar(QF+4*f,4)}, v126, s[12:15], s58 offen offset:{(f%4)*1024}"+("" if OPT.get("qpl") else " sc1"))
        return o
    P[7].dma=dma_w1(6,5)
    P[8].dma=poll+sum([qst(f) for f in range(0,6)],[])
    P[9].dma=dma_kv(4,None)+dma_kv(6,None)+sum([qst(f) for f in range(6,11)],[])
    EARLY=OPT.get("early",0)
    P[10].dma=(dma_kv(0,1)+sum([qst(f) for f in range(11,16)],[])) if not EARLY else (sum([qst(f) for f in range(11,16)],[])+dma_kv(0,1))
    QV=[]
    for s in range(8):
        for qb in range(2):
            a=O(2*s,qb); bb=O(2*s+1,qb)
            for r in (a,a+1,a+2,a+3,bb,bb+1,bb+2,bb+3): QV.append((f"v_mul_f32 v{r}, s64, v{r}",1))
            QV+= [(f"v_cvt_pk_bf16_f32 v{a}, v{a}, v{a+1}",1),(f"v_cvt_pk_bf16_f32 v{a+1}, v{a+2}, v{a+3}",1),(f"v_cvt_pk_bf16_f32 v{a+2}, v{bb}, v{bb+1}",1),(f"v_cvt_pk_bf16_f32 v{a+3}, v{bb+2}, v{bb+3}",1)]
            QV+= [(f"v_accvgpr_write_b32 a{QF+8*s+4*qb+k}, v{a+k}",1) for k in range(4)]
    P[7].valu=QV[:96]; P[7].valu_lo=4; P[8].valu=QV[96:176]; P[9].valu=QV[176:]
    P[7].valu+= [(x,1) for x in (f"s_lshl_b32 s57, s25, 4","s_add_u32 s57, s57, s26","s_lshl_b32 s57, s57, 16","s_lshl_b32 s56, s24, 14","s_add_u32 s57, s57, s56",f"s_add_u32 s57, s57, {WS_Q}")]
    P[8].post=[f"v_cmp_ne_u32 vcc, {sNON}, v2","s_nop 1","s_cbranch_vccnz SP_kv","SPB_kv:"]
    spin(A,"SP_kv","SPB_kv",VGW+1,"s91",2)
    HV=[("v_mul_f32 v13, 0xbfb8aa3b, v72",1),("v_mul_f32 v14, 0xbfb8aa3b, v76",1),("v_exp_f32 v13, v13",2),("v_exp_f32 v14, v14",2),
        ("s_nop 0",1),("v_add_f32 v13, 1.0, v13",1),("v_add_f32 v14, 1.0, v14",1),(f"v_rcp_f32 v{VG[0]}, v13",2),(f"v_rcp_f32 v{VG[1]}, v14",2),("s_nop 0",1),
        (f"v_sub_f32 v14, 1.0, v{VG[0]}",1),(f"v_sub_f32 v74, 1.0, v{VG[1]}",1)]
    for u in range(4):
        for qb in range(2):
            sc="v14" if qb==0 else "v74"
            for half in range(2):
                fb=2*u+half; dsta=HF+8*u+4*qb+2*half
                if fb==7:
                    HV+=[(f"v_accvgpr_write_b32 a{dsta}, 0",1),(f"v_accvgpr_write_b32 a{dsta+1}, 0",1)]; continue
                a=FACC+8*fb+4*qb
                HV+=[(f"v_mul_f32 v{a+q}, {sc}, v{a+q}",1) for q in range(4)]+[
                     (f"v_cvt_pk_bf16_f32 v{a}, v{a}, v{a+1}",1),(f"v_cvt_pk_bf16_f32 v{a+1}, v{a+2}, v{a+3}",1),
                     (f"v_pk_max_i16 v{a}, v{a}, 0",1),(f"v_pk_max_i16 v{a+1}, v{a+1}, 0",1),
                     (f"v_accvgpr_write_b32 a{dsta}, v{a}",1),(f"v_accvgpr_write_b32 a{dsta+1}, v{a+1}",1)]
    sp1=Phase("sp1"); add_S(sp1,4,240,False); sp1.valu=HV; sp1.valu_lo=1; sp1.dma=dma_kv(2,3)
    sp2=Phase("sp2"); add_S(sp2,4,SB[1],False)
    ps=[]
    PB16=OPT.get("pb16",0)
    if PB16:
        for k in range(16):
            r=OB+8*k
            if k%4==0: ps.append(f"s_add_u32 s57, s58, {(k//4)*4096}")
            for q in range(4): ps.append(f"v_cvt_pk_bf16_f32 v{r+q}, v{r+2*q}, v{r+2*q+1}")
            ps.append(f"buffer_store_dwordx4 v[{r}:{r+3}], v{VL16}, s[12:15], s57 offen offset:{(k%4)*1024}"+("" if OPT.get("qpl") else " sc1"))
    else:
      for k in range(32):
        if k%4==0: ps.append(f"s_add_u32 s57, s58, {(k//4)*4096}")
        ps.append(f"buffer_store_dwordx4 v[{OB+4*k}:{OB+4*k+3}], v{VL16}, s[12:15], s57 offen offset:{(k%4)*1024} sc1")
    ps+= [f"s_add_u32 s57, s58, 0x8000",f"buffer_store_dwordx4 v[88:91], v{VL16}, s[12:15], s57 offen sc1"]
    sp2.valu=[(x,1) for x in ps]; sp2.valu_lo=1
    def pbase():
        return ["s_sub_u32 s35, 15, s26","s_min_u32 s35, s35, s26","s_lshl_b32 s58, s25, 3","s_add_u32 s58, s58, s35","s_mul_i32 s58, s58, 0x21000","s_mul_i32 s35, s24, 0x8400","s_add_u32 s58, s58, s35",f"s_add_u32 s58, s58, {WS_O}"]
    def spre_post(src,tag):
        A("s_nop 7")
        A(f"s_or_b32 s35, s34, {sMODE}\ns_cmp_lg_u32 s35, 0\ns_cbranch_scc1 NM_{tag}\nv_mov_b32 v{VD}, v{VD0}\ns_nop 0")
        for ins,c in mask_ops(src): A(ins)
        A(f"NM_{tag}:")
        for qb in range(2):
            rowmax(A,src,qb,13,14)
            for r in range(4): A(f"v_sub_f32 v{NEGM+4*qb+r}, 0, v13")
            for kvb in range(2):
                for r in range(4): A(f"v_sub_f32 v{SB[0]+8*kvb+4*qb+r}, v{src+8*kvb+4*qb+r}, v13")
        for r in range(4): A(f"v_mov_b32 v{LB[1]+r}, 0")
    def kvd(u,k=True,v=True):
        pr=(u+6)%4
        return dma_kv(2*pr if k else None, 2*pr+1 if v else None)
    a0=attn_phase(0,True,False,False,True,kvd(0),"a0s")
    an=[attn_phase(u,True,True,False,False,kvd(u) if not OPT.get("nodma") else [],f"an{u}") for u in range(4)]
    if OPT.get("noval"):
        for p_ in an: p_.valu=p_.valu[-3:]
    a04=attn_phase(0,True,False,False,True,kvd(0,k=False),"a04")
    items=[(0,0),(0,1)]
    for sl in range(1,7): items+= [(sl,2),(sl,0),(sl,1)]
    def outd(k):
        pr=k%4
        return dma_out(*items[2*k],2*pr)+dma_out(*items[2*k+1],2*pr+1)
    def amtail(tag,extra=[[],[],[],[]]):
        return [attn_phase(0,True,True,True,False,extra[0]+kvd(0,k=False),f"am0{tag}"),
            attn_phase(1,True,True,True,False,dma_out(0,2,6)+dma_kv(None,7)+extra[1],f"am1{tag}"),
            attn_phase(2,True,True,True,False,(extra[2][0] if extra[2] else [])+outd(0)+(extra[2][1] if extra[2] else []),f"am2{tag}"),
            attn_phase(3,False,True,True,False,outd(1)+extra[3],f"am3{tag}")]
    am=amtail("")
    e0=pairflag("s61",64)+[f"buffer_load_dword v92, off, s[12:15], s61 sc1"]
    e0=[x.replace("s61","s91") for x in e0]
    pb_=[x.replace("s58","s91") for x in pbase()]
    def pld(k,first):
        dst=192+4*k if k<16 else 4*(k-16)
        return f"buffer_load_dwordx4 {ar(dst,4)}, v{VL16}, s[12:15], s36 offen offset:{(k%4)*1024} sc1"
    f1=pb_+["s_add_u32 s36, s91, 0x8000",f"buffer_load_dwordx4 v[88:91], v{VL16}, s[12:15], s36 offen sc1"]
    for k in range(16):
        if k%4==0: f1.append(f"s_add_u32 s36, s91, {(k//4)*4096}")
        f1.append(pld(k,True))
    f2=[]
    for k in range(16,32 if not PB16 else 16):
        if k%4==0: f2.append((f"s_add_u32 s36, s91, {(k//4)*4096}",33))
        f2.append((pld(k,False),33))
    amB=amtail("B",[e0,[],[f1,f2],[]])
    amB[1].post=amB[1].post+[f"v_cmp_ne_u32 vcc, {sNON}, v92","s_nop 1","s_cbranch_vccnz SP_pf","SPB_pf:"]
    SPINS.append(("SP_pf","SPB_pf",None,"PF",92))
    hm=[attn_phase(0,True,True,False,False,kvd(0,k=False)+dma_kv(4,None,so=sKV2),"h0"),
        attn_phase(1,True,True,False,False,dma_kv(None,7)+dma_kv(6,None,so=sKV2),"h1"),
        attn_phase(2,True,True,False,False,dma_kv(0,1,so=sKV2),"h2"),
        attn_phase(3,False,True,False,False,dma_kv(2,3,so=sKV2),"h3")]
    h04=attn_phase(0,True,False,False,True,kvd(0,k=False)+dma_kv(4,None,so=sKV2),"h04")
    hm[3].valu=hm[3].valu+[(f"v_accvgpr_mov_b32 a{k}, a{192+k}",1) for k in range(32)]
    finH=Phase("finH"); add_PV(finH,7,PB[1])
    class L(list):
        def __call__(s,t):
            for x in t.split("\n"): s.append((x,1))
    T=L(); ln=LB[1]
    for qb in range(2):
        T(f"v_add_f32 v{89+2*qb}, v{ln+2*qb}, v{ln+2*qb+1}")
        xmax(T,89+2*qb,13,"v_add_f32")
        T(f"v_mov_b32 v{88+2*qb}, v{NEGM+4*qb}")
    finH.valu=[(f"v_accvgpr_mov_b32 a{k}, a{192+k}",1) for k in range(32,64)]+list(T)+[(x,1) for x in pbase()]
    ACC=[16,48]
    def mkfin(tag,comb):
        fin=Phase("fin"+tag); add_PV(fin,7,PB[1]); add_out(fin,6,2,ACC[0],True); fin.dma=outd(2)
        FV=[]; T=L()
        if comb:
            T("s_waitcnt vmcnt(32)" if not PB16 else "s_waitcnt vmcnt(16)")
            for qb in range(2):
                T(f"v_sub_f32 v{92+qb}, v{NEGM+4*qb}, v{88+2*qb}")
        for qb in range(2):
            sc=72+2*qb
            T(f"v_add_f32 v{sc}, v{ln+2*qb}, v{ln+2*qb+1}")
            xmax(T,sc,13,"v_add_f32")
            if comb:
                sa=94+2*qb
                T(f"v_min_f32 v{sa}, 0, v{92+qb}\nv_sub_f32 v{92+qb}, 0, v{92+qb}\nv_min_f32 v{92+qb}, 0, v{92+qb}\nv_exp_f32 v{sa}, v{sa}\nv_exp_f32 v{92+qb}, v{92+qb}\ns_nop 0")
                T(f"v_mul_f32 v{sc}, v{sc}, v{92+qb}\nv_fmac_f32 v{sc}, v{sa}, v{89+2*qb}")
                T(f"v_rcp_f32 v{sc}, v{sc}\ns_nop 0\nv_mul_f32 v{sc}, v{sc}, v{VG[qb]}")
                T(f"v_mul_f32 v{sa}, v{sa}, v{sc}\nv_mul_f32 v{sc}, v{sc}, v{92+qb}")
            else:
                T(f"v_rcp_f32 v{sc}, v{sc}\ns_nop 0\nv_mul_f32 v{sc}, v{sc}, v{VG[qb]}")
        FV+=list(T)
        tk=0
        for s in range(8):
            if comb and s==4 and not PB16: FV.append(("s_waitcnt vmcnt(8)",1))
            for qb in range(2):
                a=O(2*s,qb); bb=O(2*s+1,qb); sc=f"v{72+2*qb}"; sa=f"v{94+2*qb}"
                for kk,r in enumerate((a,a+2,bb,bb+2)):
                    if comb and PB16:
                        ag=192+((r-128)>>1)
                        t=98+2*(tk%3); tk+=1
                        FV+= [(f"v_accvgpr_read_b32 v{t}, a{ag}",1,4*s+9),(f"v_mul_f32 v{r}, {sc}, v{r}",1),(f"v_and_b32 v{t+1}, 0xffff0000, v{t}",1),(f"v_lshlrev_b32 v{t}, 16, v{t}",1),
                              (f"v_mul_f32 v{r+1}, {sc}, v{r+1}",1),(f"v_fmac_f32 v{r}, v{t}, {sa}",1),(f"v_fmac_f32 v{r+1}, v{t+1}, {sa}",1)]
                    elif comb:
                        ag=192+(r-128) if r<192 else r-192
                        t=98+2*(tk%3); tk+=1
                        FV+= [(f"v_accvgpr_read_b32 v{t}, a{ag}",1,4*s+9),(f"v_accvgpr_read_b32 v{t+1}, a{ag+1}",1),
                              (f"v_mul_f32 v{r}, {sc}, v{r}",1),(f"v_mul_f32 v{r+1}, {sc}, v{r+1}",1),(f"v_fmac_f32 v{r}, v{t}, {sa}",1),(f"v_fmac_f32 v{r+1}, v{t+1}, {sa}",1)]
                    else: FV+= [(f"v_mul_f32 v{r}, {sc}, v{r}",1,4*s+9),(f"v_mul_f32 v{r+1}, {sc}, v{r+1}",1)]
                FV+= [(f"v_cvt_pk_bf16_f32 v{a}, v{a}, v{a+1}",1),(f"v_cvt_pk_bf16_f32 v{a+1}, v{a+2}, v{a+3}",1),(f"v_cvt_pk_bf16_f32 v{a+2}, v{bb}, v{bb+1}",1),(f"v_cvt_pk_bf16_f32 v{a+3}, v{bb+2}, v{bb+3}",1)]
        fin.valu=FV; fin.valu_hi=56 if not comb else 40
        if comb: fin.dma_lo=30
        return fin
    fin=mkfin("",False); finB=mkfin("B",True)
    OP=[]; started={0}
    def epi(sl):
        acc_=ACC[sl&1]; out=[f"s_add_u32 s35, s42, {sl*4096}"]
        for pp in range(2):
            for qb in range(2):
                a=acc_+16*pp+4*qb; bb=a+8
                out+= [f"v_cvt_pk_bf16_f32 v{a}, v{a}, v{a+1}",f"v_cvt_pk_bf16_f32 v{a+1}, v{a+2}, v{a+3}",f"v_cvt_pk_bf16_f32 v{a+2}, v{bb}, v{bb+1}",f"v_cvt_pk_bf16_f32 v{a+3}, v{bb+2}, v{bb+3}",
                       f"buffer_store_dwordx4 v[{a}:{a+3}], v{VL16}, s[12:15], s35 offen offset:{(pp*2+qb)*1024} sc1"]
        return out
    epi_at={1:0,3:1,4:2,6:3,7:4,9:5}
    for k in range(10):
        ph=Phase(f"o{k}")
        for h in range(2):
            sl,kind=items[2*k+h]
            add_out(ph,2*(k%4)+h,kind,ACC[sl&1],sl not in started); started.add(sl)
        d=outd(k+3) if k+3<10 else []
        if OPT.get("esm"):
            def eg(sl,lo,hi,mp=None):
                e=epi(sl); o=[e[0]]+e[1+5*lo:1+5*hi]
                return o if mp is None else [(x,mp) for x in o]
            m3=k%3
            if k>=1 and m3==1: d=d+eg(2*(k//3),0,3)
            elif k>=2 and m3==2: d=eg(2*(k//3),3,4)+d+eg(2*(k//3)+1,0,1,OPT.get("emp",38))
            elif k>=3 and m3==0: d=d+eg(2*(k//3)-1,1,4)
        elif k in epi_at: d=d+epi(epi_at[k])
        ph.dma=d; OP.append(ph)
    A("s_waitcnt vmcnt(0)")
    A(f"v_readfirstlane_b32 {sNON}, v2\ns_cmp_lg_u32 {sNON}, 0\ns_cbranch_scc1 NON_ok")
    A(f"s_mov_b32 s59, 0\ns_and_b32 s47, s2, 7\ns_lshl_b32 s47, s47, 2\nNON_l:\ns_sleep 1\nbuffer_load_dword v2, off, s[84:87], s47 sc1\ns_waitcnt vmcnt(0)\nv_readfirstlane_b32 {sNON}, v2")
    A(f"s_add_u32 s59, s59, 1\ns_cmp_ge_u32 s59, 0x8000\ns_cbranch_scc1 NON_ok\ns_cmp_eq_u32 {sNON}, 0\ns_cbranch_scc1 NON_l\nNON_ok:")
    A("s_barrier")
    SL(A,"inbar")
    for f in range(npre(P[0])):
        for t in P[0].frags[f]: A(t.format(**fr(f)))
    fc=0
    for k,ph in enumerate(P):
        fcn=fc+len(ph.frags)
        last=(k==len(P)-1)
        if last: fcn=(fcn+F-1)//F*F
        nv=nvm(ph.dma)
        nvp=nvm(P[k-1].dma) if k else 0
        if k<2: vm=63
        elif k==2: vm=0
        elif k==8: vm=nv-1
        elif k==10: vm=nvp-4+nv
        elif k<=7: vm=(KC[k-2] if k-2<len(KC) else 0)+nvp+nv
        else: vm=nvp+nv
        if k==2: vm=4+KC[0]+nvp+nv
        if k==PUBK:
            lastp=len(KC)-1; assert lastp<k
            vm=min(vm, sum(nvm(P[q].dma) for q in range(lastp+1,k+1)))
        assert vm<=63
        nx=P[k+1] if not last else sp1
        emit_phase(A,ph,fc,nx,fcn,vm,bpos=(21 if last else None),extra_bar=(pend(sP1,"kv") if k==PUBK else None))
        fc=fcn
        SL(A,f"in{k}")
    fcA=fc; assert fcA%F==0
    SL(A,"inend")
    A(f"s_nop 7\ns_cmp_eq_u32 {sROLE}, 1\ns_cbranch_scc0 MG_sp1")
    for s in range(8):
        for qb in range(2):
            for k in range(4): A(f"v_accvgpr_write_b32 a{192+8*s+4*qb+k}, v{O(2*s,qb)+k}")
    for x in pairflag("s91",0): A(x)
    A(f"SP_q:\ns_mov_b32 s59, 0\nSP_q_l:\nbuffer_load_dword v92, off, s[12:15], s91 sc1\ns_waitcnt vmcnt(0)\nv_cmp_ne_u32 vcc, {sNON}, v92\ns_add_u32 s59, s59, 1\ns_cmp_ge_u32 s59, 0x8000\ns_cbranch_scc1 SP_q_x\ns_nop 1\ns_cbranch_vccz SP_q_x\ns_sleep 1\ns_branch SP_q_l\nSP_q_x:")
    A(f"s_sub_u32 s35, 15, s26\ns_lshl_b32 s57, s25, 4\ns_add_u32 s57, s57, s35\ns_lshl_b32 s57, s57, 16\ns_lshl_b32 s56, s24, 14\ns_add_u32 s57, s57, s56\ns_add_u32 s57, s57, {WS_Q}")
    for f in range(16):
        if f%4==0 and f: A(f"s_add_u32 s57, s57, 4096")
        A(f"buffer_load_dwordx4 {ar(QF+4*f,4)}, v{VL16}, s[12:15], s57 offen offset:{(f%4)*1024} sc1")
    A("s_waitcnt vmcnt(0)")
    A("MG_sp1:")
    for x in pairflag("s36",0): A(x)
    A(f"s_cmp_eq_u32 {sROLE}, 2\ns_cselect_b32 s36, s36, 0\ns_cmp_eq_u32 s24, 0\ns_cselect_b32 {sP1}, s36, 0\ns_mov_b32 {sP2}, 0")
    if EARLY: emit_phase(A,sp1,fcA,a0,fcA,8+nvm(sp1.dma),extra_bar=pend(sP1,"sp1"))
    else: emit_phase(A,sp1,fcA,a0,fcA,nvm(P[9].dma)-8+nvm(P[10].dma)+nvm(sp1.dma))
    spre_post(240,"1")
    SL(A,"a0")
    A("MG_a0:")
    A("s_cmp_eq_u32 s34, 0\ns_cbranch_scc1 K2_n4")
    emit_phase(A,a0,fcA,an[1],fcA,nvm(a0.dma)+8,extra_bar=pend(sP1,"a0"))
    A("s_branch K2_an1\n.p2align 6\nK2_loop:")
    for u in range(4):
        if u==1: A("K2_an1:")
        emit_phase(A,an[u],fcA,an[(u+1)%4],fcA,16,extra_bar=(pend(sP2,"an1") if u==1 else None))
    A("s_sub_u32 s34, s34, 1\ns_cmp_lg_u32 s34, 0\ns_cbranch_scc1 K2_loop")
    A(f"s_cmp_lg_u32 {sMODE}, 0\ns_cbranch_scc1 MG_help\ns_cmp_eq_u32 {sROLE}, 2\ns_cbranch_scc1 MG_giver")
    emit_phase(A,am[0],fcA,am[1],fcA,nvm(am[0].dma)+8)
    A("K2_am1:")
    def tail(ams,fn,first_prev,tag):
        prevn=first_prev
        for k,ph in enumerate(ams[1:]):
            nv=nvm(ph.dma); nx=ams[k+2] if k<2 else fn
            emit_phase(A,ph,fcA,nx,fcA if k<2 else fcA,nv+prevn,extra_bar=(pend(sP2,"am1"+tag) if (k==0 and tag=="") else None))
            prevn=nv
        A(f"s_lshl_b32 s42, s25, 4\ns_add_u32 s42, s42, s26\ns_lshl_b32 s42, s42, 2\ns_add_u32 s42, s42, s24\ns_mul_i32 s42, s42, {7*4096}\ns_add_u32 s42, s42, {WS_PART}")
        fcn=fcA+len(fn.frags)
        emit_phase(A,fn,fcA,OP[0],fcn,nvm(fn.dma)+prevn,stampi=(st(STL.index("fin")) if STAMPS and "fin" in STL else None))
        return fcn
    fc=tail(am,fin,nvm(am[0].dma),"")
    A("MG_out:")
    prevn=nvm(fin.dma)
    for k,ph in enumerate(OP):
        last=(k==len(OP)-1)
        nv=nvm(ph.dma); fcn=fc+len(ph.frags)
        emit_phase(A,ph,fc,None if last else OP[k+1],fcn,nv+prevn,barrier=not last)
        prevn=nv; fc=fcn
        SL(A,f"o{k}")
    A("s_nop 7")
    for x in epi(6): A(x)
    if STAMPS:
        A("s_waitcnt vmcnt(0)"); SL(A,"end")
        A(f"s_waitcnt lgkmcnt(0)\ns_cmp_lg_u32 s24, 0\ns_cbranch_scc1 K2_st")
        A(f"s_lshl_b32 s58, s2, 6\ns_add_u32 s58, s58, {WS_STAMP}\nv_mov_b32 v2, s58\ns_mov_b64 exec, 1")
        for i in range(5): A(f"v_mov_b32 v3, s{92+2*i}\nbuffer_store_dword v3, v2, s[12:15], 0 offen offset:{4*i}")
        A("s_mov_b64 exec, -1\nK2_st:")
    A("s_endpgm")
    A("K2_n4:")
    A(f"s_cmp_lg_u32 {sMODE}, 0\ns_cbranch_scc1 K2_h4")
    emit_phase(A,a04,fcA,am[1],fcA,nvm(a04.dma)+8,extra_bar=pend(sP1,"a04"))
    A("s_branch K2_am1")
    A("K2_h4:")
    emit_phase(A,h04,fcA,hm[1],fcA,nvm(h04.dma)+8,extra_bar=pend(sP1,"h04"))
    A("s_branch MG_hm1")
    A("MG_giver:")
    emit_phase(A,amB[0],fcA,amB[1],fcA,nvm(amB[0].dma)+8)
    tail(amB,finB,nvm(amB[0].dma)-1,"B")
    A("s_branch MG_out")
    A("MG_help:")
    prevn=8
    for k,ph in enumerate(hm):
        nv=nvm(ph.dma)
        if k==1: A("MG_hm1:")
        emit_phase(A,ph,fcA,hm[k+1] if k<3 else finH,fcA,nv+prevn); prevn=nv
    emit_phase(A,finH,fcA,sp2,fcA,prevn)
    A(f"s_mov_b32 {sMODE}, 0\ns_mov_b32 s34, s26\ns_mov_b32 s33, {sKV2}")
    for x in pairflag("s36",64): A(x)
    A(f"s_cmp_eq_u32 s24, 0\ns_cselect_b32 {sP1 if EARLY else sP2}, s36, 0\ns_nop 7")
    emit_phase(A,sp2,fcA,a0,fcA,63)
    spre_post(SB[1],"2")
    if EARLY: A("s_waitcnt vmcnt(0)")
    A("s_branch MG_a0")
    for lbl,p,hs,back in RARE: rare(A,lbl,p,hs,back)
    for lbl,back,vaddr,soff,vdst in SPINS:
        if soff=="PF":
            pre=pairflag("s36",64); so="s36"
        else: pre=[]; so=soff
        ad=f"v{vaddr}, s[12:15], {so} offen" if vaddr is not None else f"off, s[12:15], {so}"
        A(f"{lbl}:\ns_mov_b32 s59, 0")
        for x in pre: A(x)
        A(f"{lbl}_l:\ns_sleep 1\nbuffer_load_dword v{vdst}, {ad} sc1\ns_waitcnt vmcnt(0)")
        A(f"v_cmp_ne_u32 vcc, {sNON}, v{vdst}\ns_add_u32 s59, s59, 1\ns_cmp_ge_u32 s59, 0x8000\ns_cbranch_scc1 {back}")
        A(f"s_nop 1\ns_cbranch_vccnz {lbl}_l\ns_branch {back}")
```

```python
from asmlib import *
RING0=64
F=16
class Phase:
    def __init__(s,name=""):
        s.name=name; s.frags=[]; s.mf=[]; s.valu=[]; s.dma=[]; s.post=[]; s.pre=[]; s.bar_pre=[]; s.nload=0
        s.valu_lo=0; s.valu_hi=None; s.fixed=[]
    def frag(s, instrs): s.frags.append(instrs); return len(s.frags)-1
    def mfma(s, f, text): s.mf.append((f,text))
def fr(fc):
    b=RING0+4*(fc%F); return dict(d4=f"a[{b}:{b+3}]", d2a=f"a[{b}:{b+1}]", d2b=f"a[{b+2}:{b+3}]", A=f"a[{b}:{b+3}]")
def npre(ph):
    n=0;c=0
    for f in ph.frags:
        if n>=8 or c+len(f)>12: break
        n+=1;c+=len(f)
    return n
def emit_phase(A, ph, fc0, nxt, fcn, vm, bpos=None, barrier=True, lat=6, stampi=None, extra_bar=None):
    n=len(ph.mf); S=Sched()
    for f,t in ph.mf:
        S.mfma(t.format(**fr(fc0+f)) if f is not None else t)
    if bpos is None: bpos=max(0,n-16)
    first={}; last={}
    for i,(f,t) in enumerate(ph.mf):
        if f is None: continue
        first.setdefault(f,i); last[f]=i
    k0=npre(ph)
    for pos,ins,c in ph.fixed: S.place(pos,ins,c)
    issue={}
    order=[]
    nf=len(ph.frags)
    rem=list(range(k0,nf))
    hi=max(0,bpos-7)
    p=0
    rd_events=[]
    for f in range(k0):
        for _ in ph.frags[f]: rd_events.append((-1,("c",f)))
    for k,f in enumerate(rem):
        pf=f-F
        lo=last[pf]+0 if (pf>=0 and pf in last) else 0
        want=int(k*hi/max(1,len(rem)))
        want=min(want, max(0,first[f]-lat-2)) if f in first else want
        p=max(p,lo,want)
        for t in ph.frags[f]:
            p=S.place(p,t.format(**fr(fc0+f)),1)
            rd_events.append((p,("c",f)))
    lastread=p
    barpos=None
    if barrier:
        barpos=max(bpos, min(n-1,lastread+6))
        barpos=min(barpos,n-1)
        bl=[]
        if stampi is not None: bl.append(stampi)
        bl.append(f"s_waitcnt vmcnt({vm}) lgkmcnt(0)")
        bl.append("s_barrier")
        if extra_bar: bl+=extra_bar
        for x in bl: S.fill[barpos].append(x); S.cap[barpos]-=1
        if nxt is not None:
            kn=npre(nxt); p=barpos
            for f in range(kn):
                lo=0
                for g in range(nf):
                    if (fc0+g)%F==(fcn+f)%F and g in last: lo=max(lo,last[g])
                p=max(p,lo)
                for t in nxt.frags[f]:
                    p=S.place(p,t.format(**fr(fcn+f)),1)
    dh=(barpos if barpos is not None else n)-1
    pos=1; dl=max(1,getattr(ph,"dma_lo",1))
    for k,ins in enumerate(ph.dma):
        want=dl+int(k*(dh-1-dl)/max(1,len(ph.dma)))
        if isinstance(ins,tuple): ins,mp=ins; want=max(want,mp)
        pos=S.place(max(pos,want),ins,1)
        if barpos is not None and pos>barpos and ins.startswith("buffer_"):
            raise Exception(f"dma after barrier in {ph.name}")
    lo=ph.valu_lo; vh=ph.valu_hi if ph.valu_hi is not None else n-2
    pos=lo; tot=len(ph.valu)
    for k,it in enumerate(ph.valu):
        ins,c=it[0],it[1]
        want=lo+int(k*(vh-lo)/max(1,tot))
        if len(it)>2: want=max(want,it[2])
        pos=S.place(max(pos,want),ins,c)
    done=0
    seq=[]
    prog=[]
    for i in range(n):
        prog.append(("m",i))
        for x in S.fill[i]: prog.append(("f",i,x))
    issued=[("c",f,-100) for f in range(k0) for _ in ph.frags[f]]
    txt2f={}
    for f in range(k0,nf):
        for t in ph.frags[f]: txt2f[t.format(**fr(fc0+f))]=f
    known=0
    for e in prog:
        if e[0]=="m":
            i=e[1]; f=ph.mf[i][0]
            if f is None: continue
            idxs=[k for k,x in enumerate(issued) if x[0]=="c" and x[1]==f]
            assert len(idxs)==len(ph.frags[f]), (ph.name,f,i,len(idxs))
            need=max(idxs)+1
            if need>known:
                tgt=need
                for k in range(need,len(issued)):
                    if issued[k][2]<=i-lat: tgt=k+1
                    else: break
                N=len(issued)-tgt
                S.pre[i].append(f"s_waitcnt lgkmcnt({min(N,15)})")
                known=tgt if N<=15 else len(issued)-15
        else:
            x=e[2]
            if x.startswith("ds_read") or x.startswith("ds_"):
                f=txt2f.get(x)
                issued.append(("c" if f is not None else "n", f, e[1]))
            elif x.startswith("s_waitcnt") and "lgkmcnt(0)" in x: known=len(issued)
    S.emit(A)
    for x in ph.post: A(x)
```

```python
import sys,os
sys.path.insert(0,"gen"); sys.path.insert(0,"dev")
import k1,k2,gen,mega
import build as B
for o in os.environ.get("OPT","").split(","):
    if o:
        kk,vv=(o.split('=')+['1'])[:2]; vv=int(vv)
        k1.OPT[kk]=vv; k2.OPT[kk]=vv; mega.OPT[kk]=vv
mega.STAMPS=bool(int(os.environ.get("STAMPS","0")))
k1.STAMPS=False
if os.environ.get("STL"): mega.STL[:]=os.environ["STL"].split(",")
outp=os.environ.get("OUT","t_mega.s")
parts=[("mega_kernel",256,163840,mega.mega),("k3_kernel",448,0,k2.k3)]
gen.build(parts,outp)
if os.environ.get("CO","1")=="1": print(B.build(outp,"mega_kernel",13))
```
